```python
import torch

def _softmax(x, axis=-1):
    return torch.softmax(x, dim=axis)
def _gelu(x):
    return torch.nn.functional.gelu(x, approximate="tanh")
def _silu(x):
    return torch.nn.functional.silu(x)
def _sigmoid(x):
    return torch.sigmoid(x)
def _layernorm(x, axis=-1, eps=1e-5):
    m = x.mean(dim=axis, keepdim=True)
    v = x.var(dim=axis, keepdim=True, unbiased=False)
    return (x - m) / torch.sqrt(v + eps)
def _scatter_add(tgt, idx, src, axis=0):
    return tgt.clone().index_add_(axis, idx, src)
def _segment_sum(src, seg, n):
    out = torch.zeros((n,) + src.shape[1:], dtype=src.dtype)
    return out.index_add_(0, seg, src)
def _pad(x, pw):
    flat = tuple(v for pair in reversed(pw) for v in pair)
    return torch.nn.functional.pad(x, flat)

kernel_name = 'gated_mix__sliding_block_cached__gqa_block_cached__decode'

def setup_inputs():

    _w = (lambda a: (lambda t: t.to(torch.bfloat16) if t.is_floating_point() else t)(torch.as_tensor(a)))
    def _A_setup():
        B, Sq, D = 1, 1, 448
        Hq, Hkv, Sk, Dh = 16, 8, 8192, 256
        assert Hq % Hkv == 0, (Hq, Hkv)
        return {
            "x": _w((lambda *s: torch.randn(*s, dtype=torch.bfloat16) * 0.05)(B, Sq, D)),
            "k_cache": _w((lambda *s: torch.randn(*s, dtype=torch.bfloat16) * 3.2)(B, Hkv, Sk, Dh)),
            "v_cache": _w((lambda *s: torch.randn(*s, dtype=torch.bfloat16) * 0.05)(B, Hkv, Sk, Dh)),
            "wq": _w((lambda *s: torch.randn(*s, dtype=torch.bfloat16) * 3.2)(D, Hq * Dh) * (D ** -0.5)),
            "wo": _w((lambda *s: torch.randn(*s, dtype=torch.bfloat16) * 0.05)(Hq * Dh, D) * ((Hq * Dh) ** -0.5)),
        }
    _A_in = _A_setup()

    def _B_setup():
        B, Sq, D = 1, 1, 448
        Hq, Hkv, Sk, Dh = 16, 8, 8192, 256
        assert Hq % Hkv == 0, (Hq, Hkv)
        return {
            "x": _w((lambda *s: torch.randn(*s, dtype=torch.bfloat16) * 0.05)(B, Sq, D)),
            "k_cache": _w((lambda *s: torch.randn(*s, dtype=torch.bfloat16) * 3.2)(B, Hkv, Sk, Dh)),
            "v_cache": _w((lambda *s: torch.randn(*s, dtype=torch.bfloat16) * 0.05)(B, Hkv, Sk, Dh)),
            "wq": _w((lambda *s: torch.randn(*s, dtype=torch.bfloat16) * 3.2)(D, Hq * Dh) * (D ** -0.5)),
            "wo": _w((lambda *s: torch.randn(*s, dtype=torch.bfloat16) * 0.05)(Hq * Dh, D) * ((Hq * Dh) ** -0.5)),
        }
    _B_in = _B_setup()

    return {
        "A_x": _A_in["x"],
        "A_k_cache": _A_in["k_cache"],
        "A_v_cache": _A_in["v_cache"],
        "A_wq": _A_in["wq"],
        "A_wo": _A_in["wo"],
        "B_x": _B_in["x"],
        "B_k_cache": _B_in["k_cache"],
        "B_v_cache": _B_in["v_cache"],
        "B_wq": _B_in["wq"],
        "B_wo": _B_in["wo"],
        "gate_w": _w((lambda *s: torch.randn(*s, dtype=torch.bfloat16) * 0.1)(448) * 16.0),
    }

def reference(A_x, A_k_cache, A_v_cache, A_wq, A_wo, B_x, B_k_cache, B_v_cache, B_wq, B_wo, gate_w):
    def _A_ref(x, k_cache, v_cache, wq, wo):
        B, Sq, D = x.shape
        Hq, Dh = 16, 256
        Hkv, Sk = k_cache.shape[1], k_cache.shape[2]
        W = min(4096, max(256, Sk // 4))
        rep = Hq // Hkv
        q = (lambda x, *d: x.permute(*d))((x @ wq).reshape(B, Sq, Hq, Dh), 0, 2, 1, 3)
        k = (lambda x, n, axis: torch.repeat_interleave(x, n, dim=axis))(k_cache[:, :, Sk - W:, :], rep, axis=1)
        v = (lambda x, n, axis: torch.repeat_interleave(x, n, dim=axis))(v_cache[:, :, Sk - W:, :], rep, axis=1)
        scores = torch.einsum("bhqd,bhkd->bhqk", q, k) * (Dh ** -0.5)
        p = _softmax(scores, axis=-1)
        o = torch.einsum("bhqk,bhkd->bhqd", p, v)
        return (lambda x, *d: x.permute(*d))(o, 0, 2, 1, 3).reshape(B, Sq, Hq * Dh) @ wo

    def _B_ref(x, k_cache, v_cache, wq, wo):
        B, Sq, D = x.shape
        Hq, Dh = 16, 256
        Hkv = k_cache.shape[1]
        rep = Hq // Hkv
        q = (lambda x, *d: x.permute(*d))((x @ wq).reshape(B, Sq, Hq, Dh), 0, 2, 1, 3)
        k = (lambda x, n, axis: torch.repeat_interleave(x, n, dim=axis))(k_cache, rep, axis=1)
        v = (lambda x, n, axis: torch.repeat_interleave(x, n, dim=axis))(v_cache, rep, axis=1)
        scores = torch.einsum("bhqd,bhkd->bhqk", q, k) * (Dh ** -0.5)
        p = _softmax(scores, axis=-1)
        o = torch.einsum("bhqk,bhkd->bhqd", p, v)
        return (lambda x, *d: x.permute(*d))(o, 0, 2, 1, 3).reshape(B, Sq, Hq * Dh) @ wo

    x = A_x
    g = _sigmoid((x * gate_w).sum(-1, keepdims=True))
    a = _A_ref(x, A_k_cache, A_v_cache, A_wq, A_wo)
    b = _B_ref(x, B_k_cache, B_v_cache, B_wq, B_wo)
    return g * a + (1 - g) * b
```

```python
class Asm:
    def __init__(self):
        self.lines = []
        self._label_n = 0

    def __call__(self, text):
        for ln in text.strip("\n").split("\n"):
            ln = ln.rstrip()
            if ln.strip() == "":
                continue
            s = ln.strip()
            if s.endswith(":") and " " not in s:
                self.lines.append(s)
            else:
                self.lines.append("    " + s)

    def raw(self, text):
        self.lines.append(text)

    def comment(self, text):
        self.lines.append("    ; " + text)

    def label(self, stem="L"):
        self._label_n += 1
        return f".{stem}_{self._label_n}"

    def text(self):
        return "\n".join(self.lines) + "\n"


class RegAlloc:
    def __init__(self, prefix, start=0, limit=256):
        self.prefix = prefix
        self.next = start
        self.limit = limit
        self.names = {}
        self.hwm = start

    def alloc(self, n=1, align=1, name=None):
        base = (self.next + align - 1) // align * align
        if base + n > self.limit:
            raise RuntimeError(f"out of {self.prefix} registers allocating {name}: {base}+{n} > {self.limit}")
        self.next = base + n
        self.hwm = max(self.hwm, self.next)
        if name:
            self.names[name] = (base, n)
        return base

    def mark(self):
        return self.next

    def release_to(self, m):
        self.next = m


def vr(base, n=1):
    return f"v{base}" if n == 1 else f"v[{base}:{base + n - 1}]"


def sr(base, n=1):
    return f"s{base}" if n == 1 else f"s[{base}:{base + n - 1}]"


HEADER = """; Kernarg layout for this problem (112 bytes, ptrs only, base s[0:1]):
"""


def kernel_descriptor(name, vgpr, sgpr, accum=None):
    if accum is None:
        accum = (vgpr + 3) // 4 * 4
    return f""".section .rodata,"a"
.p2align 6
.amdhsa_kernel {name}
  .amdhsa_next_free_vgpr {vgpr}
  .amdhsa_next_free_sgpr {sgpr}
  .amdhsa_accum_offset {accum}
  .amdhsa_group_segment_fixed_size 0
  .amdhsa_kernarg_size 112
  .amdhsa_user_sgpr_count 2
  .amdhsa_user_sgpr_kernarg_segment_ptr 1
  .amdhsa_system_sgpr_workgroup_id_x 1
.end_amdhsa_kernel
.text
"""
```

```python
def reduce16_half(regs, tmp, smask_b1, smask_b0):
    assert len(regs) == 16
    L = []
    for n in range(8):
        L.append(f"v_add_f32_dpp v{regs[n]}, v{regs[n]}, v{regs[n]} row_ror:8 row_mask:0xf bank_mask:0x3")
    for n in range(8):
        L.append(f"v_add_f32_dpp v{regs[n]}, v{regs[n+8]}, v{regs[n+8]} row_ror:8 row_mask:0xf bank_mask:0xc")
    for n in range(4):
        L.append(f"v_add_f32_dpp v{regs[n]}, v{regs[n]}, v{regs[n]} row_shl:4 row_mask:0xf bank_mask:0x5")
    for n in range(4):
        L.append(f"v_add_f32_dpp v{regs[n]}, v{regs[n+4]}, v{regs[n+4]} row_shr:4 row_mask:0xf bank_mask:0xa")
    t = regs[8:]
    L.append(f"v_add_f32_dpp v{t[0]}, v{regs[0]}, v{regs[0]} quad_perm:[2,3,0,1] row_mask:0xf bank_mask:0xf")
    L.append(f"v_add_f32_dpp v{t[1]}, v{regs[2]}, v{regs[2]} quad_perm:[2,3,0,1] row_mask:0xf bank_mask:0xf")
    L.append(f"v_add_f32_dpp v{t[2]}, v{regs[1]}, v{regs[1]} quad_perm:[2,3,0,1] row_mask:0xf bank_mask:0xf")
    L.append(f"v_add_f32_dpp v{t[3]}, v{regs[3]}, v{regs[3]} quad_perm:[2,3,0,1] row_mask:0xf bank_mask:0xf")
    L.append(f"v_cndmask_b32 v{regs[0]}, v{t[0]}, v{t[1]}, {smask_b1}")
    L.append(f"v_cndmask_b32 v{regs[1]}, v{t[2]}, v{t[3]}, {smask_b1}")
    L.append("s_nop 1")
    L.append(f"v_add_f32_dpp v{t[0]}, v{regs[0]}, v{regs[0]} quad_perm:[1,0,3,2] row_mask:0xf bank_mask:0xf")
    L.append(f"v_add_f32_dpp v{t[1]}, v{regs[1]}, v{regs[1]} quad_perm:[1,0,3,2] row_mask:0xf bank_mask:0xf")
    L.append(f"v_cndmask_b32 v{regs[0]}, v{t[0]}, v{t[1]}, {smask_b0}")
    L.append(f"v_mov_b32 v{t[0]}, v{regs[0]}")
    L.append("s_nop 1")
    L.append(f"v_permlane16_swap_b32 v{regs[0]}, v{t[0]}")
    L.append(f"v_add_f32 v{regs[0]}, v{regs[0]}, v{t[0]}")
    return L
```

```python
import math
import sys

from asmlib import Asm, HEADER, kernel_descriptor
from pieces import reduce16_half

KN = "gated_mix__sliding_block_cached__gqa_block_cached__decode_kernel"

COH = "sc1"
NT = " nt"

QP_BASE = 0
PG_BASE = 65536
Y_BASE = 0x150000
WS_USED = Y_BASE + 256 * 1792

Q_LDS = 0
ML_LDS = 2048
FLAG_LDS = 2304
G_LDS = 2320
F_LDS = 2560
O_LDS = 4096
Y_LDS = 24576
LDS_TOTAL = 40960

NWG = 256
POLL_LIMIT = 1 << 17

LOG2E = 1.4426950408889634
CST = LOG2E / 16.0


def f32bits(x):
    import struct
    return struct.unpack("<I", struct.pack("<f", x))[0]


STAMPS = False
STAMP_BASE = 0x400000


def gen():
    a = Asm()
    def stamp(k, vreg=7):
        if STAMPS:
            a(f"""
            s_memrealtime s[0:1]
            s_waitcnt lgkmcnt(0)
            v_writelane_b32 v{vreg}, s0, {k}
            """)
    a.stamp = stamp
    a.raw(HEADER.rstrip())
    a.raw(f"; @launch grid=({NWG},1,1) block=(704,1,1) lds={LDS_TOTAL}")
    a.raw('.amdgcn_target "amdgcn-amd-amdhsa--gfx950"')
    a.raw(".text")
    a.raw(f".globl {KN}")
    a.raw(".p2align 8")
    a.raw(f".type {KN},@function")
    a.raw(f"{KN}:")

    a(f"""
    s_cmp_ge_u32 s2, {NWG}
    s_cbranch_scc1 .Lexit
    s_load_dwordx16 s[4:19], s[0:1], 0
    s_load_dwordx8 s[20:27], s[0:1], 64
    s_load_dwordx4 s[28:31], s[0:1], 96
    v_lshrrev_b32 v3, 6, v0
    v_and_b32 v1, 63, v0
    v_readfirstlane_b32 s68, v3
    v_lshlrev_b32 v2, 4, v1
    """)
    a("""
    s_lshr_b32 s69, s2, 5
    s_and_b32 s70, s2, 31
    s_lshr_b32 s71, s2, 7
    s_and_b32 s72, s2, 127
    """)
    a("""
    s_cmp_eq_u32 s70, 25
    s_cselect_b32 s73, 1, 0
    """)
    a("""
    s_mov_b32 s34, 0x10000000
    s_mov_b32 s35, 0x20000
    s_mov_b32 s58, 256
    s_mov_b32 s59, 0x20000
    s_waitcnt lgkmcnt(0)
    s_mov_b32 s32, s30
    s_mov_b32 s33, s31
    s_mov_b32 s56, s28
    s_mov_b32 s57, s29
    """)
    a("""
    s_add_u32 s74, s69, 8
    s_sub_u32 s76, s70, 25
    s_cmp_le_u32 s70, 25
    s_cselect_b32 s74, s74, s69
    s_cselect_b32 s75, s70, s76
    """)
    a(f"""
    s_lshl_b32 s76, s74, 5
    s_add_u32 s76, s76, s75
    s_mul_i32 s76, s76, 2560
    s_add_u32 s76, s76, {PG_BASE}
    s_lshl_b32 s77, s69, 5
    s_mul_i32 s77, s77, 2560
    s_add_u32 s77, s77, {PG_BASE}
    """)
    a("""
    s_cmp_eq_u32 s68, 0
    s_cbranch_scc1 .Lhelper
    """)

    a(".Lcompute:")
    a("""
    s_sub_u32 s78, s68, 1
    s_mul_i32 s79, s70, 10
    s_add_u32 s79, s79, s78
    s_lshl_b32 s80, s79, 5
    s_sub_u32 s81, s80, 2048
    s_cmpk_lt_u32 s79, 256
    s_cselect_b32 s80, s80, s81
    s_cselect_b64 s[36:37], s[16:17], s[6:7]
    s_cselect_b64 s[40:41], s[18:19], s[8:9]
    s_cselect_b32 s82, 0, 1
    """)
    a("""
    s_mov_b32 s38, 0x2000000
    s_mov_b32 s39, 0x20000
    s_mov_b32 s42, 0x2000000
    s_mov_b32 s43, 0x20000
    s_lshl_b32 s83, s69, 13
    s_add_u32 s83, s83, s80
    s_lshl_b32 s83, s83, 9
    s_and_b32 s84, s73, s82
    """)
    a("v_mov_b32 v7, 0")
    a.stamp(0)
    a("s_barrier")
    KB = 8
    VB = 72
    Q = 136
    PS = 144
    S0, S1 = 160, 161
    PL0, PH0, PL1, PH1 = 162, 163, 164, 165
    T0, T1 = 166, 167
    nout = 0
    for t in range(16):
        if t % 4 == 0:
            a(f"s_add_u32 s85, s83, {t*1024}")
        a(f"buffer_load_dwordx4 v[{KB+4*t}:{KB+4*t+3}], v2, s[36:39], s85 offen offset:{(t%4)*1024}{NT}")
    for t in range(16):
        if t % 4 == 0:
            a(f"s_add_u32 s85, s83, {t*1024}")
        a(f"buffer_load_dwordx4 v[{VB+4*t}:{VB+4*t+3}], v2, s[40:43], s85 offen offset:{(t%4)*1024}{NT}")
    a.stamp(1)
    a("""
    v_and_b32 v3, 2, v1
    v_cmp_ne_u32 s[86:87], 0, v3
    v_and_b32 v3, 1, v1
    v_cmp_ne_u32 s[88:89], 0, v3
    """)
    a(f"""
    v_mov_b32 v3, {FLAG_LDS}
    s_mov_b32 s90, 0
    .Lc_waitq:
    ds_read_b32 v4, v3
    s_waitcnt lgkmcnt(0)
    v_readfirstlane_b32 s91, v4
    s_cmp_eq_u32 s91, 1
    s_cbranch_scc1 .Lc_gotq
    s_sleep 2
    s_add_u32 s90, s90, 1
    s_cmp_lt_u32 s90, {1<<24}
    s_cbranch_scc1 .Lc_waitq
    .Lc_gotq:
    """)
    a.stamp(2)
    a(f"""
    v_and_b32 v3, 31, v1
    v_lshlrev_b32 v3, 4, v3
    s_lshl_b32 s91, s84, 10
    v_add_u32 v3, s91, v3
    ds_read_b128 v[{Q}:{Q+3}], v3 offset:{Q_LDS}
    ds_read_b128 v[{Q+4}:{Q+7}], v3 offset:{Q_LDS+512}
    s_mov_b32 s92, {f32bits(CST):#x}
    s_waitcnt lgkmcnt(0)
    """)
    for c in range(2):
        a(f"s_waitcnt vmcnt({32 - 8*(c+1)})")
        for ib in range(0, 8, 2):
            accs = [(i, h) for i in (ib, ib + 1) for h in (0, 1)]
            for jj in range(4):
                for (i, h) in accs:
                    t = 8 * c + i
                    r = PS + 2 * i + h
                    if jj == 0:
                        a(f"v_dot2_f32_bf16 v{r}, v{KB+4*t+jj}, v{Q+4*h+jj}, 0")
                    else:
                        a(f"v_dot2c_f32_bf16 v{r}, v{KB+4*t+jj}, v{Q+4*h+jj}")
        a("s_nop 3")
        for ln in reduce16_half(list(range(PS, PS + 16)), [T0, T1], "s[86:87]", "s[88:89]"):
            a(ln)
        a(f"v_mov_b32 v{S0+c}, v{PS}")
    a.stamp(3)
    a("""
    s_cmp_eq_u32 s71, 0
    s_cselect_b64 s[44:45], s[12:13], s[22:23]
    s_mov_b32 s46, 3670016
    s_mov_b32 s47, 0x20000
    s_lshl_b32 s93, s72, 5
    s_and_b32 s94, s78, 7
    s_lshl_b32 s94, s94, 2
    s_add_u32 s93, s93, s94
    s_mul_i32 s93, s93, 896
    """)
    WO = KB
    for r in range(4):
        a(f"buffer_load_dwordx4 v[{WO+4*r}:{WO+4*r+3}], v2, s[44:47], s93 offen offset:{r*896}{NT}")
    M, TA, TB, TC, TD = PS, PS + 1, PS + 2, PS + 3, PS + 4
    NM, P0, P1, PSUM = PS + 5, PS + 6, PS + 7, PS + 8

    def butterfly(op, src, dst):
        L = []
        L.append("s_nop 1")
        L.append(f"{op}_dpp v{TA}, v{src}, v{src} quad_perm:[2,3,0,1] row_mask:0xf bank_mask:0xf")
        L.append("s_nop 1")
        L.append(f"{op}_dpp v{TB}, v{TA}, v{TA} row_shl:4 row_mask:0xf bank_mask:0x5")
        L.append(f"{op}_dpp v{TB}, v{TA}, v{TA} row_shr:4 row_mask:0xf bank_mask:0xa")
        L.append("s_nop 1")
        L.append(f"{op}_dpp v{TC}, v{TB}, v{TB} row_ror:8 row_mask:0xf bank_mask:0xf")
        L.append(f"v_mov_b32 v{TD}, v{TC}")
        L.append("s_nop 1")
        L.append(f"v_permlane32_swap_b32 v{TC}, v{TD}")
        L.append(f"{op} v{dst}, v{TC}, v{TD}")
        return L

    a(f"v_max_f32 v{M}, v{S0}, v{S1}")
    for ln in butterfly("v_max_f32", M, M):
        a(ln)
    a(f"""
    v_mul_f32 v{NM}, s92, v{M}
    v_sub_f32 v{NM}, 0, v{NM}
    v_fma_f32 v{P0}, v{S0}, s92, v{NM}
    v_fma_f32 v{P1}, v{S1}, s92, v{NM}
    v_exp_f32 v{P0}, v{P0}
    v_exp_f32 v{P1}, v{P1}
    s_nop 0
    v_add_f32 v{PSUM}, v{P0}, v{P1}
    v_cvt_pk_bf16_f32 v{PL0}, v{P0}, 0
    v_cvt_pk_bf16_f32 v{PH0}, 0, v{P0}
    v_cvt_pk_bf16_f32 v{PL1}, v{P1}, 0
    v_cvt_pk_bf16_f32 v{PH1}, 0, v{P1}
    """)
    for ln in butterfly("v_add_f32", PSUM, PSUM):
        a(ln)
    a(f"""
    v_sub_f32 v{T0}, 0, v{NM}
    v_mov_b32 v{T1}, v{PSUM}
    """)
    ACC = PS
    for e in range(16):
        a(f"v_mov_b32 v{ACC+e}, 0")
    for t in range(16):
        c, i = t >> 3, t & 7
        a(f"s_waitcnt vmcnt({15 - t + 4})")
        pl, ph = (PL0, PH0) if c == 0 else (PL1, PH1)
        for h in range(2):
            for e in range(4):
                a(f"v_dot2c_f32_bf16_dpp v{ACC+8*h+2*e}, v{pl}, v{VB+4*t+e} row_newbcast:{2*i+h} row_mask:0xf bank_mask:0xf")
                a(f"v_dot2c_f32_bf16_dpp v{ACC+8*h+2*e+1}, v{ph}, v{VB+4*t+e} row_newbcast:{2*i+h} row_mask:0xf bank_mask:0xf")
    a.stamp(4)
    a("s_nop 3")
    for e in range(8):
        a(f"v_permlane32_swap_b32 v{ACC+e}, v{ACC+8+e}")
    for e in range(8):
        a(f"v_add_f32 v{ACC+e}, v{ACC+e}, v{ACC+8+e}")
    a(f"""
    s_lshl_b32 s91, s78, 11
    v_lshlrev_b32 v3, 5, v1
    v_add_u32 v3, s91, v3
    ds_write_b128 v3, v[{ACC}:{ACC+3}] offset:{O_LDS}
    ds_write_b128 v3, v[{ACC+4}:{ACC+7}] offset:{O_LDS+16}
    s_lshl_b32 s91, s78, 4
    v_lshlrev_b32 v4, 3, v1
    v_add_u32 v4, s91, v4
    v_cmp_gt_u32 vcc, 2, v1
    s_and_saveexec_b64 s[94:95], vcc
    ds_write_b64 v4, v[{T0}:{T1}] offset:{ML_LDS}
    s_mov_b64 exec, s[94:95]
    s_waitcnt lgkmcnt(0)
    s_barrier
    """)
    a.stamp(5)
    a("""
    s_cmp_ge_u32 s78, 8
    s_cbranch_scc1 .Lc_skip_to_b3
    """)
    a(f"""
    s_lshr_b32 s91, s78, 2
    s_and_b32 s93, s78, 3
    s_lshl_b32 s94, s91, 10
    s_lshl_b32 s95, s93, 8
    s_add_u32 s94, s94, s95
    v_lshlrev_b32 v3, 2, v1
    v_add_u32 v3, s94, v3
    s_lshl_b32 s95, s91, 3
    v_mov_b32 v4, s95
    """)
    MW = 72
    OW = 92
    for w in range(10):
        a(f"ds_read_b64 v[{MW+2*w}:{MW+2*w+1}], v4 offset:{ML_LDS + 16*w}")
    for w in range(10):
        a(f"ds_read_b32 v{OW+w}, v3 offset:{O_LDS + 2048*w}")
    ML_, MH_, MM_ = 104, 105, 106
    SCW = 108
    OL_, OH_, LL_, LH_ = 120, 121, 122, 123
    a(f"""
    s_cmp_eq_u32 s73, 1
    s_cselect_b64 s[96:97], -1, 0
    s_waitcnt lgkmcnt(0)
    v_max3_f32 v{ML_}, v{MW}, v{MW+2}, v{MW+4}
    v_max3_f32 v{ML_}, v{ML_}, v{MW+6}, v{MW+8}
    v_max_f32 v{ML_}, v{ML_}, v{MW+10}
    v_max3_f32 v{MH_}, v{MW+12}, v{MW+14}, v{MW+16}
    v_max_f32 v{MH_}, v{MH_}, v{MW+18}
    v_max_f32 v{MM_}, v{ML_}, v{MH_}
    v_cndmask_b32 v{ML_}, v{MM_}, v{ML_}, s[96:97]
    v_cndmask_b32 v{MH_}, v{MM_}, v{MH_}, s[96:97]
    """)
    for w in range(10):
        ref = ML_ if w < 6 else MH_
        a(f"v_sub_f32 v{SCW+w}, v{MW+2*w}, v{ref}")
    for w in range(10):
        a(f"v_exp_f32 v{SCW+w}, v{SCW+w}")
    a("s_nop 0")
    a(f"v_mul_f32 v{OL_}, v{SCW}, v{OW}")
    a(f"v_mul_f32 v{LL_}, v{SCW}, v{MW+1}")
    for w in range(1, 6):
        a(f"v_fmac_f32 v{OL_}, v{SCW+w}, v{OW+w}")
        a(f"v_fmac_f32 v{LL_}, v{SCW+w}, v{MW+2*w+1}")
    a(f"v_mul_f32 v{OH_}, v{SCW+6}, v{OW+6}")
    a(f"v_mul_f32 v{LH_}, v{SCW+6}, v{MW+13}")
    for w in range(7, 10):
        a(f"v_fmac_f32 v{OH_}, v{SCW+w}, v{OW+w}")
        a(f"v_fmac_f32 v{LH_}, v{SCW+w}, v{MW+2*w+1}")
    OS_, LS_ = 124, 125
    a(f"""
    v_add_f32 v{OS_}, v{OL_}, v{OH_}
    v_add_f32 v{LS_}, v{LL_}, v{LH_}
    v_cndmask_b32 v{OL_}, v{OS_}, v{OL_}, s[96:97]
    v_cndmask_b32 v{LL_}, v{LS_}, v{LL_}, s[96:97]
    """)

    def canon(r):
        return [f"v_cmp_o_f32 vcc, v{r}, v{r}", f"v_cndmask_b32 v{r}, v126, v{r}, vcc"]

    a("v_mov_b32 v126, 0x7fc00000")
    for r in (OL_, OH_, ML_, LL_, MH_, LH_):
        for ln in canon(r):
            a(ln)
    MLP = 128
    a(f"""
    s_mul_i32 s95, s91, 1280
    s_lshl_b32 s98, s93, 8
    s_add_u32 s95, s95, s98
    v_lshlrev_b32 v5, 2, v1
    v_add_u32 v5, s95, v5
    buffer_store_dword v{OL_}, v5, s[32:35], s76 offen {COH}
    v_mov_b32 v{MLP}, v{ML_}
    v_mov_b32 v{MLP+1}, v{LL_}
    s_mul_i32 s98, s91, 1280
    v_mov_b32 v6, s98
    s_cmp_eq_u32 s93, 0
    s_cselect_b64 s[98:99], 1, 0
    s_mov_b64 exec, s[98:99]
    s_cbranch_execz .Lc_noml0
    buffer_store_dwordx2 v[{MLP}:{MLP+1}], v6, s[32:35], s76 offen offset:1024 {COH}
    .Lc_noml0:
    s_mov_b64 exec, -1
    s_cmp_eq_u32 s73, 1
    s_cbranch_scc0 .Lc_noseg1
    buffer_store_dword v{OH_}, v5, s[32:35], s77 offen {COH}
    v_mov_b32 v{MLP+2}, v{MH_}
    v_mov_b32 v{MLP+3}, v{LH_}
    s_mov_b64 exec, s[98:99]
    s_cbranch_execz .Lc_noml1
    buffer_store_dwordx2 v[{MLP+2}:{MLP+3}], v6, s[32:35], s77 offen offset:1024 {COH}
    .Lc_noml1:
    s_mov_b64 exec, -1
    .Lc_noseg1:
    """)
    a.stamp(6)
    a(f"""
    s_lshr_b32 s91, s72, 3
    s_lshr_b32 s93, s91, 1
    s_and_b32 s94, s91, 1
    s_and_b32 s95, s72, 7
    s_lshl_b32 s95, s95, 5
    s_lshl_b32 s98, s71, 3
    s_add_u32 s98, s98, s93
    s_cmp_eq_u32 s71, 0
    s_cselect_b32 s99, 7, 26
    """)
    VM, VL = 72, 73
    VO = 76
    a(f"""
    s_lshl_b32 s91, s98, 6
    s_add_u32 s91, s91, s94
    s_mul_i32 s91, s91, 1280
    s_add_u32 s91, s91, {PG_BASE}
    s_lshl_b32 s93, s78, 2
    s_add_u32 s93, s93, s95
    s_lshl_b32 s93, s93, 2
    v_mul_u32_u24 v5, 2560, v1
    v_add_u32 v6, s93, v5
    v_mov_b32 v{VM}, 0xff800000
    v_mov_b32 v{VL}, 0
    v_mov_b32 v{VO}, 0
    v_mov_b32 v{VO+1}, 0
    v_mov_b32 v{VO+2}, 0
    v_mov_b32 v{VO+3}, 0
    v_cmp_gt_u32 vcc, s99, v1
    s_and_saveexec_b64 s[96:97], vcc
    s_mov_b32 s90, 0
    .Lc_poll3:
    buffer_load_dwordx4 v[{VO}:{VO+3}], v6, s[32:35], s91 offen {COH}
    buffer_load_dwordx2 v[{VM}:{VL}], v5, s[32:35], s91 offen offset:1024 {COH}
    s_waitcnt vmcnt(0)
    v_max3_u32 v80, v{VO}, v{VO+1}, v{VO+2}
    v_max3_u32 v80, v80, v{VO+3}, v{VM}
    v_max_u32 v80, v80, v{VL}
    v_cmp_eq_u32 vcc, -1, v80
    s_cbranch_vccz .Lc_got3
    s_add_u32 s90, s90, 1
    s_cmp_lt_u32 s90, {POLL_LIMIT}
    s_cbranch_scc1 .Lc_poll3
    .Lc_got3:
    s_mov_b64 exec, s[96:97]
    """)
    a.stamp(7)
    MXT = 80
    a(f"""
    v_mov_b32 v{MXT}, v{VM}
    s_nop 1
    v_max_f32_dpp v{MXT}, v{MXT}, v{MXT} row_shr:1 row_mask:0xf bank_mask:0xf
    s_nop 1
    v_max_f32_dpp v{MXT}, v{MXT}, v{MXT} row_shr:2 row_mask:0xf bank_mask:0xf
    s_nop 1
    v_max_f32_dpp v{MXT}, v{MXT}, v{MXT} row_shr:4 row_mask:0xf bank_mask:0xf
    s_nop 1
    v_max_f32_dpp v{MXT}, v{MXT}, v{MXT} row_shr:8 row_mask:0xf bank_mask:0xf
    s_nop 1
    v_max_f32_dpp v{MXT}, v{MXT}, v{MXT} row_bcast:15 row_mask:0xa bank_mask:0xf
    s_nop 1
    v_max_f32_dpp v{MXT}, v{MXT}, v{MXT} row_bcast:31 row_mask:0xc bank_mask:0xf
    s_nop 1
    v_readlane_b32 s91, v{MXT}, 63
    s_nop 3
    v_subrev_f32 v{MXT}, s91, v{VM}
    v_exp_f32 v{MXT}, v{MXT}
    s_nop 0
    """)
    SUMS = [84, 85, 86, 87, 88]
    for e in range(4):
        a(f"v_mul_f32 v{SUMS[e]}, v{MXT}, v{VO+e}")
    a(f"v_mul_f32 v{SUMS[4]}, v{MXT}, v{VL}")
    a("s_nop 1")
    for sh in (1, 2, 4, 8):
        for r in SUMS:
            a(f"v_add_f32_dpp v{r}, v{r}, v{r} row_shr:{sh} row_mask:0xf bank_mask:0xf bound_ctrl:0")
    for r in SUMS:
        a(f"v_add_f32_dpp v{r}, v{r}, v{r} row_bcast:15 row_mask:0xa bank_mask:0xf")
    for r in SUMS:
        a(f"v_add_f32_dpp v{r}, v{r}, v{r} row_bcast:31 row_mask:0xc bank_mask:0xf")
    a(f"""
    v_rcp_f32 v89, v{SUMS[4]}
    s_nop 0
    v_mul_f32 v{SUMS[0]}, v{SUMS[0]}, v89
    v_mul_f32 v{SUMS[1]}, v{SUMS[1]}, v89
    v_mul_f32 v{SUMS[2]}, v{SUMS[2]}, v89
    v_mul_f32 v{SUMS[3]}, v{SUMS[3]}, v89
    v_cvt_pk_bf16_f32 v90, v{SUMS[0]}, v{SUMS[1]}
    v_cvt_pk_bf16_f32 v91, v{SUMS[2]}, v{SUMS[3]}
    s_nop 0
    v_readlane_b32 s91, v90, 63
    v_readlane_b32 s93, v91, 63
    s_nop 3
    s_and_b32 s94, s91, 0xffff
    s_lshl_b32 s95, s91, 16
    s_lshr_b32 s96, s91, 16
    s_and_b32 s97, s91, 0xffff0000
    s_and_b32 s98, s93, 0xffff
    s_lshl_b32 s99, s93, 16
    s_lshr_b32 s100, s93, 16
    s_and_b32 s101, s93, 0xffff0000
    """)
    YA = 96
    a("s_waitcnt vmcnt(0)")
    for r in range(4):
        slo, shi = 94 + 2 * r, 95 + 2 * r
        for e in range(4):
            if r == 0:
                a(f"v_dot2_f32_bf16 v{YA+2*e}, v{WO+4*r+e}, s{slo}, 0")
                a(f"v_dot2_f32_bf16 v{YA+2*e+1}, v{WO+4*r+e}, s{shi}, 0")
            else:
                a(f"v_dot2_f32_bf16 v{YA+2*e}, v{WO+4*r+e}, s{slo}, v{YA+2*e}")
                a(f"v_dot2_f32_bf16 v{YA+2*e+1}, v{WO+4*r+e}, s{shi}, v{YA+2*e+1}")
    a(f"""
    s_lshl_b32 s91, s78, 11
    v_lshlrev_b32 v3, 5, v1
    v_add_u32 v3, s91, v3
    s_nop 1
    ds_write_b128 v3, v[{YA}:{YA+3}] offset:{Y_LDS}
    ds_write_b128 v3, v[{YA+4}:{YA+7}] offset:{Y_LDS+16}
    s_waitcnt lgkmcnt(0)
    .Lc_skip_to_b3:
    s_barrier
    """)
    a.stamp(8)
    a("""
    s_cmp_ge_u32 s78, 7
    s_cbranch_scc1 .Lc_after_y
    """)
    a(f"""
    s_lshl_b32 s91, s78, 8
    v_lshlrev_b32 v3, 2, v1
    v_add_u32 v3, s91, v3
    """)
    for w in range(8):
        a(f"ds_read_b32 v{72+w}, v3 offset:{Y_LDS + 2048*w}")
    a(f"""
    s_mul_i32 s93, s2, 1792
    s_add_u32 s93, s93, {Y_BASE}
    v_mov_b32 v126, 0x7fc00000
    s_waitcnt lgkmcnt(0)
    v_add_f32 v72, v72, v73
    v_add_f32 v74, v74, v75
    v_add_f32 v76, v76, v77
    v_add_f32 v78, v78, v79
    v_add_f32 v72, v72, v74
    v_add_f32 v76, v76, v78
    v_add_f32 v72, v72, v76
    v_cmp_o_f32 vcc, v72, v72
    v_cndmask_b32 v72, v126, v72, vcc
    buffer_store_dword v72, v3, s[32:35], s93 offen {COH}
    .Lc_after_y:
    """)
    a.stamp(9)
    a(f"""
    s_cmp_ge_u32 s2, 28
    s_cbranch_scc1 .Lend
    s_cmp_ge_u32 s78, 8
    s_cbranch_scc1 .Lc_skip_to_b4
    """)
    ZA, ZB = 72, 76
    a(f"""
    v_lshrrev_b32 v3, 2, v1
    v_mul_u32_u24 v3, 1792, v3
    v_and_b32 v4, 3, v1
    v_lshlrev_b32 v4, 4, v4
    v_add_u32 v3, v3, v4
    s_mul_i32 s91, s78, {32*1792}
    s_lshl_b32 s93, s2, 6
    s_add_u32 s91, s91, s93
    s_add_u32 s91, s91, {Y_BASE}
    s_add_u32 s93, s91, {16*1792}
    s_mov_b32 s90, 0
    .Lc_poll4:
    buffer_load_dwordx4 v[{ZA}:{ZA+3}], v3, s[32:35], s91 offen {COH}
    buffer_load_dwordx4 v[{ZB}:{ZB+3}], v3, s[32:35], s93 offen {COH}
    s_waitcnt vmcnt(0)
    v_max3_u32 v80, v{ZA}, v{ZA+1}, v{ZA+2}
    v_max3_u32 v80, v80, v{ZA+3}, v{ZB}
    v_max3_u32 v80, v80, v{ZB+1}, v{ZB+2}
    v_max_u32 v80, v80, v{ZB+3}
    v_cmp_eq_u32 vcc, -1, v80
    s_cbranch_vccz .Lc_got4
    s_add_u32 s90, s90, 1
    s_cmp_lt_u32 s90, {POLL_LIMIT}
    s_cbranch_scc1 .Lc_poll4
    .Lc_got4:
    v_add_f32 v{ZA}, v{ZA}, v{ZB}
    v_add_f32 v{ZA+1}, v{ZA+1}, v{ZB+1}
    v_add_f32 v{ZA+2}, v{ZA+2}, v{ZB+2}
    v_add_f32 v{ZA+3}, v{ZA+3}, v{ZB+3}
    s_nop 1
    v_permlane16_swap_b32 v{ZA}, v{ZA+1}
    v_permlane16_swap_b32 v{ZA+2}, v{ZA+3}
    v_add_f32 v{ZA}, v{ZA}, v{ZA+1}
    v_add_f32 v{ZA+2}, v{ZA+2}, v{ZA+3}
    s_nop 1
    v_permlane32_swap_b32 v{ZA}, v{ZA+2}
    v_add_f32 v{ZA}, v{ZA}, v{ZA+2}
    s_nop 1
    v_add_f32_dpp v{ZB}, v{ZA}, v{ZA} row_shl:4 row_mask:0xf bank_mask:0x5
    v_add_f32_dpp v{ZB}, v{ZA}, v{ZA} row_shr:4 row_mask:0xf bank_mask:0xa
    s_nop 1
    v_add_f32_dpp v{ZA}, v{ZB}, v{ZB} row_ror:8 row_mask:0xf bank_mask:0xf
    """)
    a.stamp(10)
    a(f"""
    v_lshrrev_b32 v4, 4, v1
    v_and_b32 v5, 3, v1
    v_lshl_add_u32 v4, v5, 2, v4
    v_lshlrev_b32 v4, 2, v4
    s_lshl_b32 s91, s78, 6
    v_add_u32 v4, s91, v4
    ds_write_b32 v4, v{ZA} offset:{F_LDS}
    s_waitcnt lgkmcnt(0)
    .Lc_skip_to_b4:
    s_barrier
    s_cmp_lg_u32 s78, 0
    s_cbranch_scc1 .Lend
    """)
    a.stamp(11)
    a(f"""
    v_lshlrev_b32 v3, 2, v1
    v_cmp_gt_u32 vcc, 16, v1
    s_and_saveexec_b64 s[96:97], vcc
    """)
    for w in range(8):
        a(f"ds_read_b32 v{8+w}, v3 offset:{F_LDS + 64*w}")
    a(f"""
    v_mov_b32 v4, {G_LDS}
    ds_read_b64 v[16:17], v4
    s_mov_b32 s60, s26
    s_mov_b32 s61, s27
    s_mov_b32 s62, 896
    s_mov_b32 s63, 0x20000
    s_waitcnt lgkmcnt(0)
    v_add_f32 v8, v8, v9
    v_add_f32 v10, v10, v11
    v_add_f32 v12, v12, v13
    v_add_f32 v14, v14, v15
    v_add_f32 v8, v8, v10
    v_add_f32 v12, v12, v14
    """)

    def rbf(r, t):
        return [f"v_cvt_pk_bf16_f32 v{t}, v{r}, v{r}", f"v_lshlrev_b32 v{r}, 16, v{t}"]

    for ln in rbf(8, 18) + rbf(12, 19):
        a(ln)
    a("""
    v_mul_f32 v8, v8, v16
    v_mul_f32 v12, v12, v17
    """)
    for ln in rbf(8, 18) + rbf(12, 19):
        a(ln)
    a(f"""
    v_add_f32 v8, v8, v12
    v_cvt_pk_bf16_f32 v8, v8, v8
    v_lshlrev_b32 v3, 1, v1
    s_lshl_b32 s91, s2, 5
    buffer_store_short v8, v3, s[60:63], s91 offen
    s_mov_b64 exec, s[96:97]
    s_branch .Lend
    """)

    a(".Lhelper:")
    a("s_setprio 3")
    a("v_mov_b32 v135, 0")
    a.stamp(0, 135)
    a(f"""
    s_lshr_b32 s78, s72, 1
    s_and_b32 s79, s2, 1
    s_lshl_b32 s80, s71, 1
    s_add_u32 s80, s80, s79
    s_lshl_b32 s80, s80, 12
    s_lshl_b32 s81, s78, 6
    s_add_u32 s80, s80, s81
    s_lshl_b32 s80, s80, 2
    s_add_u32 s80, s80, {QP_BASE}
    """)
    a(f"""
    v_mov_b32 v3, {FLAG_LDS}
    v_mov_b32 v4, 0
    ds_write_b32 v3, v4
    v_mov_b32 v4, -1
    v_mov_b32 v5, -1
    v_mov_b32 v6, -1
    v_mov_b32 v7, -1
    """)
    nst = 0
    a(f"""
    v_cmp_gt_u32 vcc, 16, v1
    s_and_saveexec_b64 s[82:83], vcc
    buffer_store_dwordx4 v[4:7], v2, s[32:35], s80 offen {COH}
    s_mov_b64 exec, s[82:83]
    """)
    nst += 1
    a(f"""
    buffer_store_dwordx4 v[4:7], v2, s[32:35], s76 offen {COH}
    buffer_store_dwordx4 v[4:7], v2, s[32:35], s76 offen offset:1024 {COH}
    v_cmp_gt_u32 vcc, 32, v1
    s_and_saveexec_b64 s[82:83], vcc
    buffer_store_dwordx4 v[4:7], v2, s[32:35], s76 offen offset:2048 {COH}
    s_mov_b64 exec, s[82:83]
    """)
    nst += 3
    a(f"""
    s_mul_i32 s84, s2, 1792
    s_add_u32 s84, s84, {Y_BASE}
    buffer_store_dwordx4 v[4:7], v2, s[32:35], s84 offen {COH}
    v_cmp_gt_u32 vcc, 48, v1
    s_and_saveexec_b64 s[82:83], vcc
    buffer_store_dwordx4 v[4:7], v2, s[32:35], s84 offen offset:1024 {COH}
    s_mov_b64 exec, s[82:83]
    """)
    nst += 2
    a(f"""
    s_cmp_eq_u32 s73, 1
    s_cbranch_scc0 .Lh_noclr1
    buffer_store_dwordx4 v[4:7], v2, s[32:35], s77 offen {COH}
    buffer_store_dwordx4 v[4:7], v2, s[32:35], s77 offen offset:1024 {COH}
    v_cmp_gt_u32 vcc, 32, v1
    s_and_saveexec_b64 s[82:83], vcc
    buffer_store_dwordx4 v[4:7], v2, s[32:35], s77 offen offset:2048 {COH}
    s_mov_b64 exec, s[82:83]
    .Lh_noclr1:
    """)
    a("""
    s_mov_b32 s52, s4
    s_mov_b32 s53, s5
    s_mov_b32 s54, 896
    s_mov_b32 s55, 0x20000
    s_cmp_eq_u32 s71, 0
    s_cselect_b64 s[48:49], s[10:11], s[20:21]
    s_mov_b32 s50, 3670016
    s_mov_b32 s51, 0x20000
    s_mov_b32 s64, s24
    s_mov_b32 s65, s25
    s_mov_b32 s66, 896
    s_mov_b32 s67, 0x20000
    """)
    XR = 120
    WR = 8
    a(f"""
    v_lshrrev_b32 v3, 3, v1
    v_mul_u32_u24 v134, 56, v3
    s_mul_i32 s85, s79, 448
    """)
    for u in range(7):
        a(f"buffer_load_dwordx2 v[{XR+2*u}:{XR+2*u+1}], v134, s[52:55], s85 offen offset:{8*u}")
    a(f"""
    v_lshrrev_b32 v3, 3, v1
    s_mov_b32 s86, {28*8192}
    v_mul_lo_u32 v3, v3, s86
    v_and_b32 v9, 7, v1
    v_lshl_add_u32 v3, v9, 4, v3
    s_mul_i32 s86, s79, {224*8192}
    s_lshl_b32 s87, s78, 7
    s_add_u32 s86, s86, s87
    """)
    for t in range(28):
        a(f"buffer_load_dwordx4 v[{WR+4*t}:{WR+4*t+3}], v3, s[48:51], s86 offen{NT}")
        if t != 27:
            a("s_add_u32 s86, s86, 8192")
    GX, GW = 136, 140
    a(f"""
    buffer_load_dwordx4 v[{GX}:{GX+3}], v2, s[52:55], 0 offen
    buffer_load_dwordx4 v[{GW}:{GW+3}], v2, s[64:67], 0 offen
    s_waitcnt lgkmcnt(0)
    s_barrier
    """)
    a.stamp(1, 135)
    a(f"""
    s_waitcnt vmcnt(37)
    v_mov_b32 v4, 1
    v_mov_b32 v5, 0
    s_mov_b64 exec, 1
    buffer_atomic_add v4, v5, s[56:59], 0 offen
    s_mov_b64 exec, -1
    """)
    ACCQ = 144
    XL, XH = 152, 153
    for t in range(28):
        if t % 4 == 0:
            a(f"s_waitcnt vmcnt({28 - (t+4) + 3})")
        u = t >> 1
        xr = XR + u
        if t % 2 == 0:
            a(f"v_and_b32 v{XL}, 0xffff, v{xr}")
            a(f"v_lshlrev_b32 v{XH}, 16, v{xr}")
        else:
            a(f"v_lshrrev_b32 v{XL}, 16, v{xr}")
            a(f"v_and_b32 v{XH}, 0xffff0000, v{xr}")
        a("s_nop 0")
        for e in range(4):
            if t == 0:
                a(f"v_dot2_f32_bf16 v{ACCQ+2*e}, v{WR+4*t+e}, v{XL}, 0")
                a(f"v_dot2_f32_bf16 v{ACCQ+2*e+1}, v{WR+4*t+e}, v{XH}, 0")
            else:
                a(f"v_dot2c_f32_bf16 v{ACCQ+2*e}, v{WR+4*t+e}, v{XL}")
                a(f"v_dot2c_f32_bf16 v{ACCQ+2*e+1}, v{WR+4*t+e}, v{XH}")
    a.stamp(2, 135)
    a("s_nop 3")
    for k in range(4):
        x, y = ACCQ + 2 * k, ACCQ + 2 * k + 1
        a(f"v_add_f32_dpp v{x}, v{x}, v{x} row_ror:8 row_mask:0xf bank_mask:0x3")
    for k in range(4):
        x, y = ACCQ + 2 * k, ACCQ + 2 * k + 1
        a(f"v_add_f32_dpp v{x}, v{y}, v{y} row_ror:8 row_mask:0xf bank_mask:0xc")
    a(f"""
    s_nop 1
    v_permlane16_swap_b32 v{ACCQ}, v{ACCQ+2}
    v_permlane16_swap_b32 v{ACCQ+4}, v{ACCQ+6}
    v_add_f32 v{ACCQ}, v{ACCQ}, v{ACCQ+2}
    v_add_f32 v{ACCQ+4}, v{ACCQ+4}, v{ACCQ+6}
    s_nop 1
    v_permlane32_swap_b32 v{ACCQ}, v{ACCQ+4}
    v_add_f32 v{ACCQ}, v{ACCQ}, v{ACCQ+4}
    v_mov_b32 v ACCT, 0x7fc00000
    """.replace("v ACCT", "v154"))
    a(f"""
    v_cmp_o_f32 vcc, v{ACCQ}, v{ACCQ}
    v_cndmask_b32 v{ACCQ}, v154, v{ACCQ}, vcc
    v_and_b32 v3, 7, v1
    v_lshrrev_b32 v9, 3, v1
    v_lshl_add_u32 v3, v3, 3, v9
    v_lshlrev_b32 v3, 2, v3
    buffer_store_dword v{ACCQ}, v3, s[32:35], s80 offen {COH}
    """)
    GA = 156
    a(f"s_waitcnt vmcnt(2)")
    a(f"v_mov_b32 v{GA}, 0")
    for e in range(4):
        a(f"""
        v_lshlrev_b32 v157, 16, v{GX+e}
        v_and_b32 v158, 0xffff0000, v{GX+e}
        v_lshlrev_b32 v159, 16, v{GW+e}
        v_and_b32 v160, 0xffff0000, v{GW+e}
        v_mul_f32 v157, v157, v159
        v_mul_f32 v158, v158, v160
        v_cvt_pk_bf16_f32 v157, v157, v158
        s_nop 0
        v_lshlrev_b32 v158, 16, v157
        v_and_b32 v159, 0xffff0000, v157
        v_add_f32 v{GA}, v{GA}, v158
        v_add_f32 v{GA}, v{GA}, v159
        """)
    a("s_nop 1")
    for sh in (1, 2, 4, 8):
        a(f"v_add_f32_dpp v{GA}, v{GA}, v{GA} row_shr:{sh} row_mask:0xf bank_mask:0xf bound_ctrl:0")
        a("s_nop 1")
    a(f"v_add_f32_dpp v{GA}, v{GA}, v{GA} row_bcast:15 row_mask:0xa bank_mask:0xf")
    a("s_nop 1")
    a(f"v_add_f32_dpp v{GA}, v{GA}, v{GA} row_bcast:31 row_mask:0xc bank_mask:0xf")
    a("s_nop 1")
    a(f"""
    v_cvt_pk_bf16_f32 v157, v{GA}, v{GA}
    v_lshlrev_b32 v157, 16, v157
    s_mov_b32 s88, {f32bits(-LOG2E):#x}
    v_mul_f32 v157, s88, v157
    v_exp_f32 v157, v157
    s_nop 0
    v_add_f32 v157, 1.0, v157
    v_rcp_f32 v157, v157
    s_nop 0
    v_cvt_pk_bf16_f32 v157, v157, v157
    v_lshlrev_b32 v160, 16, v157
    v_sub_f32 v161, 1.0, v160
    v_cvt_pk_bf16_f32 v161, v161, v161
    v_lshlrev_b32 v161, 16, v161
    v_mov_b32 v3, {G_LDS}
    v_cmp_eq_u32 vcc, 63, v1
    s_and_saveexec_b64 s[82:83], vcc
    ds_write_b64 v3, v[160:161]
    s_mov_b64 exec, s[82:83]
    """)
    a.stamp(3, 135)
    a(f"""
    s_mov_b32 s90, 0
    v_mov_b32 v5, 0
    .Lh_pollinit:
    buffer_load_dword v4, v5, s[56:59], 0 offen {COH}
    s_waitcnt vmcnt(0)
    v_readfirstlane_b32 s91, v4
    s_nop 3
    s_cmp_ge_u32 s91, {NWG}
    s_cbranch_scc1 .Lh_gotinit
    s_sleep 1
    s_add_u32 s90, s90, 1
    s_cmp_lt_u32 s90, {POLL_LIMIT}
    s_cbranch_scc1 .Lh_pollinit
    .Lh_gotinit:
    """)
    a.stamp(4, 135)
    Qa, Qb, Qc, Qd = 8, 12, 16, 20

    def fetch_q(seg, goff_sgpr):
        lab = a.label("Lh_pollq")
        labd = a.label("Lh_gotq")
        a(f"""
        s_mov_b32 s90, 0
        s_add_u32 s92, {goff_sgpr}, 16384
        {lab}:
        buffer_load_dwordx4 v[{Qa}:{Qa+3}], v2, s[32:35], {goff_sgpr} offen {COH}
        buffer_load_dwordx4 v[{Qb}:{Qb+3}], v2, s[32:35], {goff_sgpr} offen offset:1024 {COH}
        buffer_load_dwordx4 v[{Qc}:{Qc+3}], v2, s[32:35], s92 offen {COH}
        buffer_load_dwordx4 v[{Qd}:{Qd+3}], v2, s[32:35], s92 offen offset:1024 {COH}
        s_waitcnt vmcnt(0)
        v_max3_u32 v24, v{Qa}, v{Qa+1}, v{Qa+2}
        v_max3_u32 v24, v24, v{Qa+3}, v{Qb}
        v_max3_u32 v24, v24, v{Qb+1}, v{Qb+2}
        v_max3_u32 v24, v24, v{Qb+3}, v{Qc}
        v_max3_u32 v24, v24, v{Qc+1}, v{Qc+2}
        v_max3_u32 v24, v24, v{Qc+3}, v{Qd}
        v_max3_u32 v24, v24, v{Qd+1}, v{Qd+2}
        v_max_u32 v24, v24, v{Qd+3}
        v_cmp_eq_u32 vcc, -1, v24
        s_cbranch_vccz {labd}
        s_sleep 1
        s_add_u32 s90, s90, 1
        s_cmp_lt_u32 s90, {POLL_LIMIT}
        s_cbranch_scc1 {lab}
        {labd}:
        """)
        for e in range(4):
            a(f"v_add_f32 v{Qa+e}, v{Qa+e}, v{Qc+e}")
            a(f"v_add_f32 v{Qb+e}, v{Qb+e}, v{Qd+e}")
        a(f"""
        v_cvt_pk_bf16_f32 v24, v{Qa}, v{Qa+1}
        v_cvt_pk_bf16_f32 v25, v{Qa+2}, v{Qa+3}
        v_cvt_pk_bf16_f32 v26, v{Qb}, v{Qb+1}
        v_cvt_pk_bf16_f32 v27, v{Qb+2}, v{Qb+3}
        v_lshlrev_b32 v28, 3, v1
        s_nop 0
        ds_write_b64 v28, v[24:25] offset:{Q_LDS + seg*1024}
        ds_write_b64 v28, v[26:27] offset:{Q_LDS + seg*1024 + 512}
        """)

    a(f"""
    s_lshr_b32 s91, s74, 3
    s_lshl_b32 s91, s91, 15
    s_lshl_b32 s93, s69, 11
    s_add_u32 s91, s91, s93
    s_add_u32 s91, s91, {QP_BASE}
    """)
    fetch_q(0, "s91")
    a(f"""
    s_cmp_eq_u32 s73, 1
    s_cbranch_scc0 .Lh_noq1
    s_lshl_b32 s91, s69, 11
    s_add_u32 s91, s91, {QP_BASE}
    """)
    fetch_q(1, "s91")
    a.stamp(5, 135)
    a(f"""
    .Lh_noq1:
    s_waitcnt lgkmcnt(0)
    v_mov_b32 v3, {FLAG_LDS}
    v_mov_b32 v4, 1
    ds_write_b32 v3, v4
    s_waitcnt lgkmcnt(0)
    s_setprio 0
    s_barrier
    s_barrier
    s_cmp_ge_u32 s2, 28
    s_cbranch_scc1 .Lend
    s_barrier
    .Lend:
    """)
    if STAMPS:
        a(f"""
        s_lshl_b32 s3, s2, 4
        s_add_u32 s3, s3, s68
        s_lshl_b32 s3, s3, 8
        s_add_u32 s3, s3, {STAMP_BASE}
        s_cmp_eq_u32 s68, 0
        s_cbranch_scc1 .Lst_h
        v_lshlrev_b32 v3, 2, v1
        buffer_store_dword v7, v3, s[32:35], s3 offen
        s_branch .Lexit
        .Lst_h:
        v_lshlrev_b32 v3, 2, v1
        buffer_store_dword v135, v3, s[32:35], s3 offen
        """)
    a("""
    .Lexit:
    s_endpgm
    """)
    a.raw(kernel_descriptor(KN, 168, 102))
    return a.text()


if __name__ == "__main__":
    if len(sys.argv) > 2 and sys.argv[2] == "stamps":
        STAMPS = True
    out = sys.argv[1] if len(sys.argv) > 1 else "gated_mix__sliding_block_cached__gqa_block_cached__decode.s"
    open(out, "w").write(gen())
```

```python
import math
import sys

from asmlib import Asm, HEADER, kernel_descriptor
from pieces import reduce16_half

KN = "gated_mix__sliding_block_cached__gqa_block_cached__decode_kernel"

COH = "sc1"
NT = " nt"

QP_BASE = 0
PG_BASE = 65536
Y_BASE = 0x150000
WS_USED = Y_BASE + 256 * 1792

Q_LDS = 0
ML_LDS = 2048
FLAG_LDS = 2304
G_LDS = 2320
O3_LDS = 2432
F_LDS = 2560
O_LDS = 4096
Y_LDS = 24576
LDS_TOTAL = 40960

NWG = 256
EARLY_B0 = False
STREAM_ONLY = False
POLL_LIMIT = 1 << 17

LOG2E = 1.4426950408889634
CST = LOG2E / 16.0


def f32bits(x):
    import struct
    return struct.unpack("<I", struct.pack("<f", x))[0]


STAMPS = False
STAMP_BASE = 0x400000


def gen():
    a = Asm()
    def stamp(k, vreg=7):
        if STAMPS:
            a(f"""
            s_memrealtime s[0:1]
            s_waitcnt lgkmcnt(0)
            v_writelane_b32 v{vreg}, s0, {k}
            """)
    a.stamp = stamp
    a.raw(HEADER.rstrip())
    a.raw(f"; @launch grid=({NWG},1,1) block=(704,1,1) lds={LDS_TOTAL}")
    a.raw('.amdgcn_target "amdgcn-amd-amdhsa--gfx950"')
    a.raw(".text")
    a.raw(f".globl {KN}")
    a.raw(".p2align 8")
    a.raw(f".type {KN},@function")
    a.raw(f"{KN}:")

    a(f"""
    s_cmp_ge_u32 s2, {NWG}
    s_cbranch_scc1 .Lexit
    s_load_dwordx16 s[4:19], s[0:1], 0
    s_load_dwordx8 s[20:27], s[0:1], 64
    s_load_dwordx4 s[28:31], s[0:1], 96
    v_lshrrev_b32 v3, 6, v0
    v_and_b32 v1, 63, v0
    v_readfirstlane_b32 s68, v3
    v_lshlrev_b32 v2, 4, v1
    """)
    a("""
    s_lshr_b32 s69, s2, 5
    s_and_b32 s70, s2, 31
    s_lshr_b32 s71, s2, 7
    s_and_b32 s72, s2, 127
    """)
    a("""
    s_cmp_eq_u32 s70, 25
    s_cselect_b32 s73, 1, 0
    """)
    a("""
    s_mov_b32 s34, 0x10000000
    s_mov_b32 s35, 0x20000
    s_mov_b32 s58, 256
    s_mov_b32 s59, 0x20000
    s_waitcnt lgkmcnt(0)
    s_mov_b32 s32, s30
    s_mov_b32 s33, s31
    s_mov_b32 s56, s28
    s_mov_b32 s57, s29
    """)
    a("""
    s_add_u32 s74, s69, 8
    s_sub_u32 s76, s70, 25
    s_cmp_le_u32 s70, 25
    s_cselect_b32 s74, s74, s69
    s_cselect_b32 s75, s70, s76
    """)
    a(f"""
    s_lshl_b32 s76, s74, 5
    s_add_u32 s76, s76, s75
    s_mul_i32 s76, s76, 2560
    s_add_u32 s76, s76, {PG_BASE}
    s_lshl_b32 s77, s69, 5
    s_mul_i32 s77, s77, 2560
    s_add_u32 s77, s77, {PG_BASE}
    """)
    a("""
    s_cmp_eq_u32 s68, 0
    s_cbranch_scc1 .Lhelper
    """)

    a(".Lcompute:")
    a("""
    s_sub_u32 s78, s68, 1
    s_mul_i32 s79, s70, 10
    s_add_u32 s79, s79, s78
    s_lshl_b32 s80, s79, 5
    s_sub_u32 s81, s80, 2048
    s_cmpk_lt_u32 s79, 256
    s_cselect_b32 s80, s80, s81
    s_cselect_b64 s[36:37], s[16:17], s[6:7]
    s_cselect_b64 s[40:41], s[18:19], s[8:9]
    s_cselect_b32 s82, 0, 1
    """)
    a("""
    s_mov_b32 s38, 0x2000000
    s_mov_b32 s39, 0x20000
    s_mov_b32 s42, 0x2000000
    s_mov_b32 s43, 0x20000
    s_lshl_b32 s83, s69, 13
    s_add_u32 s83, s83, s80
    s_lshl_b32 s83, s83, 9
    s_and_b32 s84, s73, s82
    """)
    a("v_mov_b32 v7, 0")
    a.stamp(0)
    a("s_barrier")
    KB = 8
    VB = 72
    Q = 136
    PS = 144
    S0, S1 = 160, 161
    PL0, PH0, PL1, PH1 = 162, 163, 164, 165
    T0, T1 = 166, 167
    nout = 0
    for t in range(16):
        if t % 4 == 0:
            a(f"s_add_u32 s85, s83, {t*1024}")
        a(f"buffer_load_dwordx4 v[{KB+4*t}:{KB+4*t+3}], v2, s[36:39], s85 offen offset:{(t%4)*1024}{NT}")
    for t in range(16):
        if t % 4 == 0:
            a(f"s_add_u32 s85, s83, {t*1024}")
        a(f"buffer_load_dwordx4 v[{VB+4*t}:{VB+4*t+3}], v2, s[40:43], s85 offen offset:{(t%4)*1024}{NT}")
    a.stamp(1)
    if STREAM_ONLY:
        a("""
        s_waitcnt vmcnt(0)
        s_cmp_eq_u32 s71, 0
        s_cselect_b64 s[44:45], s[12:13], s[22:23]
        s_mov_b32 s46, 3670016
        s_mov_b32 s47, 0x20000
        s_lshl_b32 s93, s72, 5
        s_and_b32 s94, s78, 7
        s_lshl_b32 s94, s94, 2
        s_add_u32 s93, s93, s94
        s_mul_i32 s93, s93, 896
        """)
        for r in range(4):
            a(f"buffer_load_dwordx4 v[{KB+4*r}:{KB+4*r+3}], v2, s[44:47], s93 offen offset:{r*896}{NT}")
        a("""
        s_waitcnt vmcnt(0)
        s_branch .Lexit
        """)
    a("""
    v_and_b32 v3, 2, v1
    v_cmp_ne_u32 s[86:87], 0, v3
    v_and_b32 v3, 1, v1
    v_cmp_ne_u32 s[88:89], 0, v3
    """)
    a(f"""
    v_mov_b32 v3, {FLAG_LDS}
    s_mov_b32 s90, 0
    .Lc_waitq:
    ds_read_b32 v4, v3
    s_waitcnt lgkmcnt(0)
    v_readfirstlane_b32 s91, v4
    s_cmp_eq_u32 s91, 1
    s_cbranch_scc1 .Lc_gotq
    s_sleep 2
    s_add_u32 s90, s90, 1
    s_cmp_lt_u32 s90, {1<<24}
    s_cbranch_scc1 .Lc_waitq
    .Lc_gotq:
    """)
    a.stamp(2)
    a(f"""
    v_and_b32 v3, 31, v1
    v_lshlrev_b32 v3, 4, v3
    s_lshl_b32 s91, s84, 10
    v_add_u32 v3, s91, v3
    ds_read_b128 v[{Q}:{Q+3}], v3 offset:{Q_LDS}
    ds_read_b128 v[{Q+4}:{Q+7}], v3 offset:{Q_LDS+512}
    s_mov_b32 s92, {f32bits(CST):#x}
    s_waitcnt lgkmcnt(0)
    """)
    for c in range(2):
        a(f"s_waitcnt vmcnt({32 - 8*(c+1)})")
        for ib in range(0, 8, 2):
            accs = [(i, h) for i in (ib, ib + 1) for h in (0, 1)]
            for jj in range(4):
                for (i, h) in accs:
                    t = 8 * c + i
                    r = PS + 2 * i + h
                    if jj == 0:
                        a(f"v_dot2_f32_bf16 v{r}, v{KB+4*t+jj}, v{Q+4*h+jj}, 0")
                    else:
                        a(f"v_dot2c_f32_bf16 v{r}, v{KB+4*t+jj}, v{Q+4*h+jj}")
        a("s_nop 3")
        for ln in reduce16_half(list(range(PS, PS + 16)), [T0, T1], "s[86:87]", "s[88:89]"):
            a(ln)
        a(f"v_mov_b32 v{S0+c}, v{PS}")
    a.stamp(3)
    a("""
    s_cmp_eq_u32 s71, 0
    s_cselect_b64 s[44:45], s[12:13], s[22:23]
    s_mov_b32 s46, 3670016
    s_mov_b32 s47, 0x20000
    s_lshl_b32 s93, s72, 5
    s_and_b32 s94, s78, 7
    s_lshl_b32 s94, s94, 2
    s_add_u32 s93, s93, s94
    s_mul_i32 s93, s93, 896
    """)
    WO = KB
    for r in range(4):
        a(f"buffer_load_dwordx4 v[{WO+4*r}:{WO+4*r+3}], v2, s[44:47], s93 offen offset:{r*896}{NT}")
    M, TA, TB, TC, TD = PS, PS + 1, PS + 2, PS + 3, PS + 4
    NM, P0, P1, PSUM = PS + 5, PS + 6, PS + 7, PS + 8

    def butterfly(op, src, dst):
        L = []
        L.append("s_nop 1")
        L.append(f"{op}_dpp v{TA}, v{src}, v{src} quad_perm:[2,3,0,1] row_mask:0xf bank_mask:0xf")
        L.append("s_nop 1")
        L.append(f"{op}_dpp v{TB}, v{TA}, v{TA} row_shl:4 row_mask:0xf bank_mask:0x5")
        L.append(f"{op}_dpp v{TB}, v{TA}, v{TA} row_shr:4 row_mask:0xf bank_mask:0xa")
        L.append("s_nop 1")
        L.append(f"{op}_dpp v{TC}, v{TB}, v{TB} row_ror:8 row_mask:0xf bank_mask:0xf")
        L.append(f"v_mov_b32 v{TD}, v{TC}")
        L.append("s_nop 1")
        L.append(f"v_permlane32_swap_b32 v{TC}, v{TD}")
        L.append(f"{op} v{dst}, v{TC}, v{TD}")
        return L

    a(f"v_max_f32 v{M}, v{S0}, v{S1}")
    for ln in butterfly("v_max_f32", M, M):
        a(ln)
    a(f"""
    v_mul_f32 v{NM}, s92, v{M}
    v_sub_f32 v{NM}, 0, v{NM}
    v_fma_f32 v{P0}, v{S0}, s92, v{NM}
    v_fma_f32 v{P1}, v{S1}, s92, v{NM}
    v_exp_f32 v{P0}, v{P0}
    v_exp_f32 v{P1}, v{P1}
    s_nop 0
    v_add_f32 v{PSUM}, v{P0}, v{P1}
    v_cvt_pk_bf16_f32 v{PL0}, v{P0}, 0
    v_cvt_pk_bf16_f32 v{PH0}, 0, v{P0}
    v_cvt_pk_bf16_f32 v{PL1}, v{P1}, 0
    v_cvt_pk_bf16_f32 v{PH1}, 0, v{P1}
    """)
    for ln in butterfly("v_add_f32", PSUM, PSUM):
        a(ln)
    a(f"""
    v_sub_f32 v{T0}, 0, v{NM}
    v_mov_b32 v{T1}, v{PSUM}
    """)
    ACC = PS
    for e in range(16):
        a(f"v_mov_b32 v{ACC+e}, 0")
    for t in range(16):
        c, i = t >> 3, t & 7
        a(f"s_waitcnt vmcnt({15 - t + 4})")
        pl, ph = (PL0, PH0) if c == 0 else (PL1, PH1)
        for h in range(2):
            for e in range(4):
                a(f"v_dot2c_f32_bf16_dpp v{ACC+8*h+2*e}, v{pl}, v{VB+4*t+e} row_newbcast:{2*i+h} row_mask:0xf bank_mask:0xf")
                a(f"v_dot2c_f32_bf16_dpp v{ACC+8*h+2*e+1}, v{ph}, v{VB+4*t+e} row_newbcast:{2*i+h} row_mask:0xf bank_mask:0xf")
    a.stamp(4)
    a("s_nop 3")
    for e in range(8):
        a(f"v_permlane32_swap_b32 v{ACC+e}, v{ACC+8+e}")
    for e in range(8):
        a(f"v_add_f32 v{ACC+e}, v{ACC+e}, v{ACC+8+e}")
    a(f"""
    s_lshl_b32 s91, s78, 11
    v_lshlrev_b32 v3, 5, v1
    v_add_u32 v3, s91, v3
    ds_write_b128 v3, v[{ACC}:{ACC+3}] offset:{O_LDS}
    ds_write_b128 v3, v[{ACC+4}:{ACC+7}] offset:{O_LDS+16}
    s_lshl_b32 s91, s78, 4
    v_lshlrev_b32 v4, 3, v1
    v_add_u32 v4, s91, v4
    v_cmp_gt_u32 vcc, 2, v1
    s_and_saveexec_b64 s[94:95], vcc
    ds_write_b64 v4, v[{T0}:{T1}] offset:{ML_LDS}
    s_mov_b64 exec, s[94:95]
    s_waitcnt lgkmcnt(0)
    s_barrier
    """)
    a.stamp(5)
    a("""
    s_cmp_ge_u32 s78, 8
    s_cbranch_scc1 .Lc_skip_to_b3
    """)
    a(f"""
    s_lshr_b32 s91, s78, 2
    s_and_b32 s93, s78, 3
    s_lshl_b32 s94, s91, 10
    s_lshl_b32 s95, s93, 8
    s_add_u32 s94, s94, s95
    v_lshlrev_b32 v3, 2, v1
    v_add_u32 v3, s94, v3
    s_lshl_b32 s95, s91, 3
    v_mov_b32 v4, s95
    """)
    MW = 72
    OW = 92
    for w in range(10):
        a(f"ds_read_b64 v[{MW+2*w}:{MW+2*w+1}], v4 offset:{ML_LDS + 16*w}")
    for w in range(10):
        a(f"ds_read_b32 v{OW+w}, v3 offset:{O_LDS + 2048*w}")
    ML_, MH_, MM_ = 104, 105, 106
    SCW = 108
    OL_, OH_, LL_, LH_ = 120, 121, 122, 123
    a(f"""
    s_cmp_eq_u32 s73, 1
    s_cselect_b64 s[96:97], -1, 0
    s_waitcnt lgkmcnt(0)
    v_max3_f32 v{ML_}, v{MW}, v{MW+2}, v{MW+4}
    v_max3_f32 v{ML_}, v{ML_}, v{MW+6}, v{MW+8}
    v_max_f32 v{ML_}, v{ML_}, v{MW+10}
    v_max3_f32 v{MH_}, v{MW+12}, v{MW+14}, v{MW+16}
    v_max_f32 v{MH_}, v{MH_}, v{MW+18}
    v_max_f32 v{MM_}, v{ML_}, v{MH_}
    v_cndmask_b32 v{ML_}, v{MM_}, v{ML_}, s[96:97]
    v_cndmask_b32 v{MH_}, v{MM_}, v{MH_}, s[96:97]
    """)
    for w in range(10):
        ref = ML_ if w < 6 else MH_
        a(f"v_sub_f32 v{SCW+w}, v{MW+2*w}, v{ref}")
    for w in range(10):
        a(f"v_exp_f32 v{SCW+w}, v{SCW+w}")
    a("s_nop 0")
    a(f"v_mul_f32 v{OL_}, v{SCW}, v{OW}")
    a(f"v_mul_f32 v{LL_}, v{SCW}, v{MW+1}")
    for w in range(1, 6):
        a(f"v_fmac_f32 v{OL_}, v{SCW+w}, v{OW+w}")
        a(f"v_fmac_f32 v{LL_}, v{SCW+w}, v{MW+2*w+1}")
    a(f"v_mul_f32 v{OH_}, v{SCW+6}, v{OW+6}")
    a(f"v_mul_f32 v{LH_}, v{SCW+6}, v{MW+13}")
    for w in range(7, 10):
        a(f"v_fmac_f32 v{OH_}, v{SCW+w}, v{OW+w}")
        a(f"v_fmac_f32 v{LH_}, v{SCW+w}, v{MW+2*w+1}")
    OS_, LS_ = 124, 125
    a(f"""
    v_add_f32 v{OS_}, v{OL_}, v{OH_}
    v_add_f32 v{LS_}, v{LL_}, v{LH_}
    v_cndmask_b32 v{OL_}, v{OS_}, v{OL_}, s[96:97]
    v_cndmask_b32 v{LL_}, v{LS_}, v{LL_}, s[96:97]
    """)

    def canon(r):
        return [f"v_cmp_o_f32 vcc, v{r}, v{r}", f"v_cndmask_b32 v{r}, v126, v{r}, vcc"]

    a("v_mov_b32 v126, 0x7fc00000")
    for r in (OL_, OH_, ML_, LL_, MH_, LH_):
        for ln in canon(r):
            a(ln)
    MLP = 128
    a(f"""
    s_mul_i32 s95, s91, 1280
    s_lshl_b32 s98, s93, 8
    s_add_u32 s95, s95, s98
    v_lshlrev_b32 v5, 2, v1
    v_add_u32 v5, s95, v5
    buffer_store_dword v{OL_}, v5, s[32:35], s76 offen {COH}
    v_mov_b32 v{MLP}, v{ML_}
    v_mov_b32 v{MLP+1}, v{LL_}
    s_mul_i32 s98, s91, 1280
    v_mov_b32 v6, s98
    s_cmp_eq_u32 s93, 0
    s_cselect_b64 s[98:99], 1, 0
    s_mov_b64 exec, s[98:99]
    s_cbranch_execz .Lc_noml0
    buffer_store_dwordx2 v[{MLP}:{MLP+1}], v6, s[32:35], s76 offen offset:1024 {COH}
    .Lc_noml0:
    s_mov_b64 exec, -1
    s_cmp_eq_u32 s73, 1
    s_cbranch_scc0 .Lc_noseg1
    buffer_store_dword v{OH_}, v5, s[32:35], s77 offen {COH}
    v_mov_b32 v{MLP+2}, v{MH_}
    v_mov_b32 v{MLP+3}, v{LH_}
    s_mov_b64 exec, s[98:99]
    s_cbranch_execz .Lc_noml1
    buffer_store_dwordx2 v[{MLP+2}:{MLP+3}], v6, s[32:35], s77 offen offset:1024 {COH}
    .Lc_noml1:
    s_mov_b64 exec, -1
    .Lc_noseg1:
    """)
    a.stamp(6)
    a.stamp(6)
    a(f"""
    s_barrier
    s_lshl_b32 s91, s78, 4
    s_add_u32 s91, s91, {O3_LDS}
    v_mov_b32 v3, s91
    ds_read_b128 v[72:75], v3
    s_waitcnt lgkmcnt(0)
    v_readfirstlane_b32 s94, v72
    v_readfirstlane_b32 s96, v73
    v_readfirstlane_b32 s98, v74
    v_readfirstlane_b32 s100, v75
    s_nop 3
    s_lshl_b32 s95, s94, 16
    s_lshl_b32 s97, s96, 16
    s_lshl_b32 s99, s98, 16
    s_lshl_b32 s101, s100, 16
    """)
    a.stamp(7)
    YA = 96
    a("s_waitcnt vmcnt(0)")
    for r in range(4):
        slo, shi = 94 + 2 * r, 95 + 2 * r
        for e in range(4):
            if r == 0:
                a(f"v_dot2_f32_bf16 v{YA+2*e}, v{WO+4*r+e}, s{slo}, 0")
                a(f"v_dot2_f32_bf16 v{YA+2*e+1}, v{WO+4*r+e}, s{shi}, 0")
            else:
                a(f"v_dot2_f32_bf16 v{YA+2*e}, v{WO+4*r+e}, s{slo}, v{YA+2*e}")
                a(f"v_dot2_f32_bf16 v{YA+2*e+1}, v{WO+4*r+e}, s{shi}, v{YA+2*e+1}")
    a(f"""
    s_lshl_b32 s91, s78, 11
    v_lshlrev_b32 v3, 5, v1
    v_add_u32 v3, s91, v3
    s_nop 1
    ds_write_b128 v3, v[{YA}:{YA+3}] offset:{Y_LDS}
    ds_write_b128 v3, v[{YA+4}:{YA+7}] offset:{Y_LDS+16}
    s_waitcnt lgkmcnt(0)
    s_branch .Lc_b3
    .Lc_skip_to_b3:
    s_barrier
    .Lc_b3:
    s_barrier
    """)
    a.stamp(8)
    a("""
    s_cmp_ge_u32 s78, 7
    s_cbranch_scc1 .Lc_after_y
    """)
    a(f"""
    s_lshl_b32 s91, s78, 8
    v_lshlrev_b32 v3, 2, v1
    v_add_u32 v3, s91, v3
    """)
    for w in range(8):
        a(f"ds_read_b32 v{72+w}, v3 offset:{Y_LDS + 2048*w}")
    a(f"""
    s_mul_i32 s93, s2, 1792
    s_add_u32 s93, s93, {Y_BASE}
    v_mov_b32 v126, 0x7fc00000
    s_waitcnt lgkmcnt(0)
    v_add_f32 v72, v72, v73
    v_add_f32 v74, v74, v75
    v_add_f32 v76, v76, v77
    v_add_f32 v78, v78, v79
    v_add_f32 v72, v72, v74
    v_add_f32 v76, v76, v78
    v_add_f32 v72, v72, v76
    v_cmp_o_f32 vcc, v72, v72
    v_cndmask_b32 v72, v126, v72, vcc
    buffer_store_dword v72, v3, s[32:35], s93 offen {COH}
    .Lc_after_y:
    """)
    a.stamp(9)
    a(f"""
    s_cmp_ge_u32 s2, 28
    s_cbranch_scc1 .Lend
    s_cmp_ge_u32 s78, 8
    s_cbranch_scc1 .Lc_skip_to_b4
    """)
    ZA, ZB = 72, 76
    a(f"""
    v_lshrrev_b32 v3, 2, v1
    v_mul_u32_u24 v3, 1792, v3
    v_and_b32 v4, 3, v1
    v_lshlrev_b32 v4, 4, v4
    v_add_u32 v3, v3, v4
    s_mul_i32 s91, s78, {32*1792}
    s_lshl_b32 s93, s2, 6
    s_add_u32 s91, s91, s93
    s_add_u32 s91, s91, {Y_BASE}
    s_add_u32 s93, s91, {16*1792}
    s_mov_b32 s90, 0
    .Lc_poll4:
    buffer_load_dwordx4 v[{ZA}:{ZA+3}], v3, s[32:35], s91 offen {COH}
    buffer_load_dwordx4 v[{ZB}:{ZB+3}], v3, s[32:35], s93 offen {COH}
    s_waitcnt vmcnt(0)
    v_max3_u32 v80, v{ZA}, v{ZA+1}, v{ZA+2}
    v_max3_u32 v80, v80, v{ZA+3}, v{ZB}
    v_max3_u32 v80, v80, v{ZB+1}, v{ZB+2}
    v_max_u32 v80, v80, v{ZB+3}
    v_cmp_eq_u32 vcc, -1, v80
    s_cbranch_vccz .Lc_got4
    s_add_u32 s90, s90, 1
    s_cmp_lt_u32 s90, {POLL_LIMIT}
    s_cbranch_scc1 .Lc_poll4
    .Lc_got4:
    v_add_f32 v{ZA}, v{ZA}, v{ZB}
    v_add_f32 v{ZA+1}, v{ZA+1}, v{ZB+1}
    v_add_f32 v{ZA+2}, v{ZA+2}, v{ZB+2}
    v_add_f32 v{ZA+3}, v{ZA+3}, v{ZB+3}
    s_nop 1
    v_permlane16_swap_b32 v{ZA}, v{ZA+1}
    v_permlane16_swap_b32 v{ZA+2}, v{ZA+3}
    v_add_f32 v{ZA}, v{ZA}, v{ZA+1}
    v_add_f32 v{ZA+2}, v{ZA+2}, v{ZA+3}
    s_nop 1
    v_permlane32_swap_b32 v{ZA}, v{ZA+2}
    v_add_f32 v{ZA}, v{ZA}, v{ZA+2}
    s_nop 1
    v_add_f32_dpp v{ZB}, v{ZA}, v{ZA} row_shl:4 row_mask:0xf bank_mask:0x5
    v_add_f32_dpp v{ZB}, v{ZA}, v{ZA} row_shr:4 row_mask:0xf bank_mask:0xa
    s_nop 1
    v_add_f32_dpp v{ZA}, v{ZB}, v{ZB} row_ror:8 row_mask:0xf bank_mask:0xf
    """)
    a.stamp(10)
    a(f"""
    v_lshrrev_b32 v4, 4, v1
    v_and_b32 v5, 3, v1
    v_lshl_add_u32 v4, v5, 2, v4
    v_lshlrev_b32 v4, 2, v4
    s_lshl_b32 s91, s78, 6
    v_add_u32 v4, s91, v4
    ds_write_b32 v4, v{ZA} offset:{F_LDS}
    s_waitcnt lgkmcnt(0)
    .Lc_skip_to_b4:
    s_barrier
    s_cmp_lg_u32 s78, 0
    s_cbranch_scc1 .Lend
    """)
    a.stamp(11)
    a(f"""
    v_lshlrev_b32 v3, 2, v1
    v_cmp_gt_u32 vcc, 16, v1
    s_and_saveexec_b64 s[96:97], vcc
    """)
    for w in range(8):
        a(f"ds_read_b32 v{8+w}, v3 offset:{F_LDS + 64*w}")
    a(f"""
    v_mov_b32 v4, {G_LDS}
    ds_read_b64 v[16:17], v4
    s_mov_b32 s60, s26
    s_mov_b32 s61, s27
    s_mov_b32 s62, 896
    s_mov_b32 s63, 0x20000
    s_waitcnt lgkmcnt(0)
    v_add_f32 v8, v8, v9
    v_add_f32 v10, v10, v11
    v_add_f32 v12, v12, v13
    v_add_f32 v14, v14, v15
    v_add_f32 v8, v8, v10
    v_add_f32 v12, v12, v14
    """)

    def rbf(r, t):
        return [f"v_cvt_pk_bf16_f32 v{t}, v{r}, v{r}", f"v_lshlrev_b32 v{r}, 16, v{t}"]

    for ln in rbf(8, 18) + rbf(12, 19):
        a(ln)
    a("""
    v_mul_f32 v8, v8, v16
    v_mul_f32 v12, v12, v17
    """)
    for ln in rbf(8, 18) + rbf(12, 19):
        a(ln)
    a(f"""
    v_add_f32 v8, v8, v12
    v_cvt_pk_bf16_f32 v8, v8, v8
    v_lshlrev_b32 v3, 1, v1
    s_lshl_b32 s91, s2, 5
    buffer_store_short v8, v3, s[60:63], s91 offen
    s_mov_b64 exec, s[96:97]
    s_branch .Lend
    """)

    a(".Lhelper:")
    a("s_setprio 3")
    a("v_mov_b32 v135, 0")
    a.stamp(0, 135)
    a(f"""
    s_lshr_b32 s78, s72, 1
    s_and_b32 s79, s2, 1
    s_lshl_b32 s80, s71, 1
    s_add_u32 s80, s80, s79
    s_lshl_b32 s80, s80, 12
    s_lshl_b32 s81, s78, 6
    s_add_u32 s80, s80, s81
    s_lshl_b32 s80, s80, 2
    s_add_u32 s80, s80, {QP_BASE}
    """)
    a(f"""
    v_mov_b32 v3, {FLAG_LDS}
    v_mov_b32 v4, 0
    ds_write_b32 v3, v4
    {"s_waitcnt lgkmcnt(0)" if EARLY_B0 else ""}
    {"s_barrier" if EARLY_B0 else ""}
    v_mov_b32 v4, -1
    v_mov_b32 v5, -1
    v_mov_b32 v6, -1
    v_mov_b32 v7, -1
    """)
    nst = 0
    a(f"""
    v_cmp_gt_u32 vcc, 16, v1
    s_and_saveexec_b64 s[82:83], vcc
    buffer_store_dwordx4 v[4:7], v2, s[32:35], s80 offen {COH}
    s_mov_b64 exec, s[82:83]
    """)
    nst += 1
    a(f"""
    buffer_store_dwordx4 v[4:7], v2, s[32:35], s76 offen {COH}
    buffer_store_dwordx4 v[4:7], v2, s[32:35], s76 offen offset:1024 {COH}
    v_cmp_gt_u32 vcc, 32, v1
    s_and_saveexec_b64 s[82:83], vcc
    buffer_store_dwordx4 v[4:7], v2, s[32:35], s76 offen offset:2048 {COH}
    s_mov_b64 exec, s[82:83]
    """)
    nst += 3
    a(f"""
    s_mul_i32 s84, s2, 1792
    s_add_u32 s84, s84, {Y_BASE}
    buffer_store_dwordx4 v[4:7], v2, s[32:35], s84 offen {COH}
    v_cmp_gt_u32 vcc, 48, v1
    s_and_saveexec_b64 s[82:83], vcc
    buffer_store_dwordx4 v[4:7], v2, s[32:35], s84 offen offset:1024 {COH}
    s_mov_b64 exec, s[82:83]
    """)
    nst += 2
    a(f"""
    s_cmp_eq_u32 s73, 1
    s_cbranch_scc0 .Lh_noclr1
    buffer_store_dwordx4 v[4:7], v2, s[32:35], s77 offen {COH}
    buffer_store_dwordx4 v[4:7], v2, s[32:35], s77 offen offset:1024 {COH}
    v_cmp_gt_u32 vcc, 32, v1
    s_and_saveexec_b64 s[82:83], vcc
    buffer_store_dwordx4 v[4:7], v2, s[32:35], s77 offen offset:2048 {COH}
    s_mov_b64 exec, s[82:83]
    .Lh_noclr1:
    """)
    a("""
    s_mov_b32 s52, s4
    s_mov_b32 s53, s5
    s_mov_b32 s54, 896
    s_mov_b32 s55, 0x20000
    s_cmp_eq_u32 s71, 0
    s_cselect_b64 s[48:49], s[10:11], s[20:21]
    s_mov_b32 s50, 3670016
    s_mov_b32 s51, 0x20000
    s_mov_b32 s64, s24
    s_mov_b32 s65, s25
    s_mov_b32 s66, 896
    s_mov_b32 s67, 0x20000
    """)
    XR = 120
    WR = 8
    a(f"""
    v_lshrrev_b32 v3, 3, v1
    v_mul_u32_u24 v134, 56, v3
    s_mul_i32 s85, s79, 448
    """)
    for u in range(7):
        a(f"buffer_load_dwordx2 v[{XR+2*u}:{XR+2*u+1}], v134, s[52:55], s85 offen offset:{8*u}")
    a(f"""
    v_lshrrev_b32 v3, 3, v1
    s_mov_b32 s86, {28*8192}
    v_mul_lo_u32 v3, v3, s86
    v_and_b32 v9, 7, v1
    v_lshl_add_u32 v3, v9, 4, v3
    s_mul_i32 s86, s79, {224*8192}
    s_lshl_b32 s87, s78, 7
    s_add_u32 s86, s86, s87
    """)
    for t in range(28):
        a(f"buffer_load_dwordx4 v[{WR+4*t}:{WR+4*t+3}], v3, s[48:51], s86 offen{NT}")
        if t != 27:
            a("s_add_u32 s86, s86, 8192")
    GX, GW = 136, 140
    a(f"""
    buffer_load_dwordx4 v[{GX}:{GX+3}], v2, s[52:55], 0 offen
    buffer_load_dwordx4 v[{GW}:{GW+3}], v2, s[64:67], 0 offen
    s_waitcnt lgkmcnt(0)
    {"" if EARLY_B0 else "s_barrier"}
    """)
    a.stamp(1, 135)
    if STREAM_ONLY:
        a("""
        s_waitcnt vmcnt(0)
        s_branch .Lexit
        """)
    a(f"""
    s_waitcnt vmcnt(37)
    v_mov_b32 v4, 1
    s_and_b32 s89, s2, 3
    s_lshl_b32 s89, s89, 6
    v_mov_b32 v5, 0
    s_mov_b64 exec, 1
    buffer_atomic_add v4, v5, s[56:59], s89 offen
    s_mov_b64 exec, -1
    """)
    ACCQ = 144
    XL, XH = 152, 153
    for t in range(28):
        if t % 4 == 0:
            a(f"s_waitcnt vmcnt({28 - (t+4) + 3})")
        u = t >> 1
        xr = XR + u
        if t % 2 == 0:
            a(f"v_and_b32 v{XL}, 0xffff, v{xr}")
            a(f"v_lshlrev_b32 v{XH}, 16, v{xr}")
        else:
            a(f"v_lshrrev_b32 v{XL}, 16, v{xr}")
            a(f"v_and_b32 v{XH}, 0xffff0000, v{xr}")
        a("s_nop 0")
        for e in range(4):
            if t == 0:
                a(f"v_dot2_f32_bf16 v{ACCQ+2*e}, v{WR+4*t+e}, v{XL}, 0")
                a(f"v_dot2_f32_bf16 v{ACCQ+2*e+1}, v{WR+4*t+e}, v{XH}, 0")
            else:
                a(f"v_dot2c_f32_bf16 v{ACCQ+2*e}, v{WR+4*t+e}, v{XL}")
                a(f"v_dot2c_f32_bf16 v{ACCQ+2*e+1}, v{WR+4*t+e}, v{XH}")
    a.stamp(2, 135)
    a("s_nop 3")
    for k in range(4):
        x, y = ACCQ + 2 * k, ACCQ + 2 * k + 1
        a(f"v_add_f32_dpp v{x}, v{x}, v{x} row_ror:8 row_mask:0xf bank_mask:0x3")
    for k in range(4):
        x, y = ACCQ + 2 * k, ACCQ + 2 * k + 1
        a(f"v_add_f32_dpp v{x}, v{y}, v{y} row_ror:8 row_mask:0xf bank_mask:0xc")
    a(f"""
    s_nop 1
    v_permlane16_swap_b32 v{ACCQ}, v{ACCQ+2}
    v_permlane16_swap_b32 v{ACCQ+4}, v{ACCQ+6}
    v_add_f32 v{ACCQ}, v{ACCQ}, v{ACCQ+2}
    v_add_f32 v{ACCQ+4}, v{ACCQ+4}, v{ACCQ+6}
    s_nop 1
    v_permlane32_swap_b32 v{ACCQ}, v{ACCQ+4}
    v_add_f32 v{ACCQ}, v{ACCQ}, v{ACCQ+4}
    v_mov_b32 v ACCT, 0x7fc00000
    """.replace("v ACCT", "v154"))
    a(f"""
    v_cmp_o_f32 vcc, v{ACCQ}, v{ACCQ}
    v_cndmask_b32 v{ACCQ}, v154, v{ACCQ}, vcc
    v_and_b32 v3, 7, v1
    v_lshrrev_b32 v9, 3, v1
    v_lshl_add_u32 v3, v3, 3, v9
    v_lshlrev_b32 v3, 2, v3
    buffer_store_dword v{ACCQ}, v3, s[32:35], s80 offen {COH}
    """)
    GA = 156
    a(f"s_waitcnt vmcnt(2)")
    a(f"v_mov_b32 v{GA}, 0")
    for e in range(4):
        a(f"""
        v_lshlrev_b32 v157, 16, v{GX+e}
        v_and_b32 v158, 0xffff0000, v{GX+e}
        v_lshlrev_b32 v159, 16, v{GW+e}
        v_and_b32 v160, 0xffff0000, v{GW+e}
        v_mul_f32 v157, v157, v159
        v_mul_f32 v158, v158, v160
        v_cvt_pk_bf16_f32 v157, v157, v158
        s_nop 0
        v_lshlrev_b32 v158, 16, v157
        v_and_b32 v159, 0xffff0000, v157
        v_add_f32 v{GA}, v{GA}, v158
        v_add_f32 v{GA}, v{GA}, v159
        """)
    a("s_nop 1")
    for sh in (1, 2, 4, 8):
        a(f"v_add_f32_dpp v{GA}, v{GA}, v{GA} row_shr:{sh} row_mask:0xf bank_mask:0xf bound_ctrl:0")
        a("s_nop 1")
    a(f"v_add_f32_dpp v{GA}, v{GA}, v{GA} row_bcast:15 row_mask:0xa bank_mask:0xf")
    a("s_nop 1")
    a(f"v_add_f32_dpp v{GA}, v{GA}, v{GA} row_bcast:31 row_mask:0xc bank_mask:0xf")
    a("s_nop 1")
    a(f"""
    v_cvt_pk_bf16_f32 v157, v{GA}, v{GA}
    v_lshlrev_b32 v157, 16, v157
    s_mov_b32 s88, {f32bits(-LOG2E):#x}
    v_mul_f32 v157, s88, v157
    v_exp_f32 v157, v157
    s_nop 0
    v_add_f32 v157, 1.0, v157
    v_rcp_f32 v157, v157
    s_nop 0
    v_cvt_pk_bf16_f32 v157, v157, v157
    v_lshlrev_b32 v160, 16, v157
    v_sub_f32 v161, 1.0, v160
    v_cvt_pk_bf16_f32 v161, v161, v161
    v_lshlrev_b32 v161, 16, v161
    v_mov_b32 v3, {G_LDS}
    v_cmp_eq_u32 vcc, 63, v1
    s_and_saveexec_b64 s[82:83], vcc
    ds_write_b64 v3, v[160:161]
    s_mov_b64 exec, s[82:83]
    """)
    a.stamp(3, 135)
    a(f"""
    s_mov_b32 s90, 0
    v_and_b32 v5, 3, v1
    v_lshlrev_b32 v5, 6, v5
    .Lh_pollinit:
    buffer_load_dword v4, v5, s[56:59], 0 offen {COH}
    s_waitcnt vmcnt(0)
    v_readlane_b32 s91, v4, 0
    v_readlane_b32 s92, v4, 1
    v_readlane_b32 s93, v4, 2
    v_readlane_b32 s94, v4, 3
    s_nop 3
    s_add_u32 s91, s91, s92
    s_add_u32 s93, s93, s94
    s_add_u32 s91, s91, s93
    s_cmp_ge_u32 s91, {NWG}
    s_cbranch_scc1 .Lh_gotinit
    s_sleep 1
    s_add_u32 s90, s90, 1
    s_cmp_lt_u32 s90, {POLL_LIMIT}
    s_cbranch_scc1 .Lh_pollinit
    .Lh_gotinit:
    """)
    a.stamp(4, 135)
    Qa, Qb, Qc, Qd = 8, 12, 16, 20

    def fetch_q(seg, goff_sgpr):
        lab = a.label("Lh_pollq")
        labd = a.label("Lh_gotq")
        a(f"""
        s_mov_b32 s90, 0
        s_add_u32 s92, {goff_sgpr}, 16384
        {lab}:
        buffer_load_dwordx4 v[{Qa}:{Qa+3}], v2, s[32:35], {goff_sgpr} offen {COH}
        buffer_load_dwordx4 v[{Qb}:{Qb+3}], v2, s[32:35], {goff_sgpr} offen offset:1024 {COH}
        buffer_load_dwordx4 v[{Qc}:{Qc+3}], v2, s[32:35], s92 offen {COH}
        buffer_load_dwordx4 v[{Qd}:{Qd+3}], v2, s[32:35], s92 offen offset:1024 {COH}
        s_waitcnt vmcnt(0)
        v_max3_u32 v24, v{Qa}, v{Qa+1}, v{Qa+2}
        v_max3_u32 v24, v24, v{Qa+3}, v{Qb}
        v_max3_u32 v24, v24, v{Qb+1}, v{Qb+2}
        v_max3_u32 v24, v24, v{Qb+3}, v{Qc}
        v_max3_u32 v24, v24, v{Qc+1}, v{Qc+2}
        v_max3_u32 v24, v24, v{Qc+3}, v{Qd}
        v_max3_u32 v24, v24, v{Qd+1}, v{Qd+2}
        v_max_u32 v24, v24, v{Qd+3}
        v_cmp_eq_u32 vcc, -1, v24
        s_cbranch_vccz {labd}
        s_sleep 1
        s_add_u32 s90, s90, 1
        s_cmp_lt_u32 s90, {POLL_LIMIT}
        s_cbranch_scc1 {lab}
        {labd}:
        """)
        for e in range(4):
            a(f"v_add_f32 v{Qa+e}, v{Qa+e}, v{Qc+e}")
            a(f"v_add_f32 v{Qb+e}, v{Qb+e}, v{Qd+e}")
        a(f"""
        v_cvt_pk_bf16_f32 v24, v{Qa}, v{Qa+1}
        v_cvt_pk_bf16_f32 v25, v{Qa+2}, v{Qa+3}
        v_cvt_pk_bf16_f32 v26, v{Qb}, v{Qb+1}
        v_cvt_pk_bf16_f32 v27, v{Qb+2}, v{Qb+3}
        v_lshlrev_b32 v28, 3, v1
        s_nop 0
        ds_write_b64 v28, v[24:25] offset:{Q_LDS + seg*1024}
        ds_write_b64 v28, v[26:27] offset:{Q_LDS + seg*1024 + 512}
        """)

    a(f"""
    s_lshr_b32 s91, s74, 3
    s_lshl_b32 s91, s91, 15
    s_lshl_b32 s93, s69, 11
    s_add_u32 s91, s91, s93
    s_add_u32 s91, s91, {QP_BASE}
    """)
    fetch_q(0, "s91")
    a(f"""
    s_cmp_eq_u32 s73, 1
    s_cbranch_scc0 .Lh_noq1
    s_lshl_b32 s91, s69, 11
    s_add_u32 s91, s91, {QP_BASE}
    """)
    fetch_q(1, "s91")
    a.stamp(5, 135)
    a(f"""
    .Lh_noq1:
    s_waitcnt lgkmcnt(0)
    v_mov_b32 v3, {FLAG_LDS}
    v_mov_b32 v4, 1
    ds_write_b32 v3, v4
    s_waitcnt lgkmcnt(0)
    s_barrier
    """)
    HO = 8
    HM, HL = 24, 25
    a(f"""
    s_lshr_b32 s78, s72, 3
    s_lshr_b32 s79, s78, 1
    s_and_b32 s80, s78, 1
    s_and_b32 s81, s72, 7
    s_lshl_b32 s81, s81, 5
    s_lshl_b32 s82, s71, 3
    s_add_u32 s82, s82, s79
    s_cmp_eq_u32 s71, 0
    s_cselect_b32 s83, 7, 26
    s_lshl_b32 s84, s82, 6
    s_add_u32 s84, s84, s80
    s_mul_i32 s84, s84, 1280
    s_add_u32 s84, s84, {PG_BASE}
    s_lshl_b32 s85, s81, 2
    s_add_u32 s85, s85, s84
    v_lshrrev_b32 v28, 3, v1
    v_and_b32 v29, 7, v1
    """)
    for t in range(4):
        a(f"""
        v_add_u32 v30, {8*t}, v28
        v_cmp_gt_u32 vcc, s83, v30
        s_nop 1
        v_cndmask_b32 v30, 0, v30, vcc
        v_mul_u32_u24 v{32+t}, 2560, v30
        v_lshl_add_u32 v{32+t}, v29, 4, v{32+t}
        """)
    a(f"""
    v_cmp_gt_u32 s[86:87], s83, v1
    s_nop 1
    v_cndmask_b32 v30, 0, v1, s[86:87]
    v_mul_u32_u24 v36, 2560, v30
    s_mov_b32 s90, 0
    .Lh_poll3:
    """)
    for t in range(4):
        a(f"buffer_load_dwordx4 v[{HO+4*t}:{HO+4*t+3}], v{32+t}, s[32:35], s85 offen {COH}")
    a(f"""
    buffer_load_dwordx2 v[{HM}:{HL}], v36, s[32:35], s84 offen offset:1024 {COH}
    s_waitcnt vmcnt(0)
    v_max3_u32 v30, v{HO}, v{HO+1}, v{HO+2}
    v_max3_u32 v31, v{HO+3}, v{HO+4}, v{HO+5}
    v_max3_u32 v30, v30, v{HO+6}, v{HO+7}
    v_max3_u32 v31, v31, v{HO+8}, v{HO+9}
    v_max3_u32 v30, v30, v{HO+10}, v{HO+11}
    v_max3_u32 v31, v31, v{HO+12}, v{HO+13}
    v_max3_u32 v30, v30, v{HO+14}, v{HO+15}
    v_max3_u32 v31, v31, v{HM}, v{HL}
    v_max_u32 v30, v30, v31
    v_cmp_eq_u32 vcc, -1, v30
    s_cbranch_vccz .Lh_got3
    s_add_u32 s90, s90, 1
    s_cmp_lt_u32 s90, {POLL_LIMIT}
    s_cbranch_scc1 .Lh_poll3
    .Lh_got3:
    v_mov_b32 v37, 0xff800000
    v_cndmask_b32 v{HM}, v37, v{HM}, s[86:87]
    v_cndmask_b32 v{HL}, 0, v{HL}, s[86:87]
    v_mov_b32 v38, v{HM}
    s_nop 1
    v_max_f32_dpp v38, v38, v38 row_shr:1 row_mask:0xf bank_mask:0xf
    s_nop 1
    v_max_f32_dpp v38, v38, v38 row_shr:2 row_mask:0xf bank_mask:0xf
    s_nop 1
    v_max_f32_dpp v38, v38, v38 row_shr:4 row_mask:0xf bank_mask:0xf
    s_nop 1
    v_max_f32_dpp v38, v38, v38 row_shr:8 row_mask:0xf bank_mask:0xf
    s_nop 1
    v_max_f32_dpp v38, v38, v38 row_bcast:15 row_mask:0xa bank_mask:0xf
    s_nop 1
    v_max_f32_dpp v38, v38, v38 row_bcast:31 row_mask:0xc bank_mask:0xf
    s_nop 1
    v_readlane_b32 s88, v38, 63
    s_nop 3
    v_subrev_f32 v38, s88, v{HM}
    v_exp_f32 v38, v38
    s_nop 0
    v_mul_f32 v39, v38, v{HL}
    s_nop 1
    v_add_f32_dpp v39, v39, v39 row_shr:1 row_mask:0xf bank_mask:0xf bound_ctrl:0
    s_nop 1
    v_add_f32_dpp v39, v39, v39 row_shr:2 row_mask:0xf bank_mask:0xf bound_ctrl:0
    s_nop 1
    v_add_f32_dpp v39, v39, v39 row_shr:4 row_mask:0xf bank_mask:0xf bound_ctrl:0
    s_nop 1
    v_add_f32_dpp v39, v39, v39 row_shr:8 row_mask:0xf bank_mask:0xf bound_ctrl:0
    s_nop 1
    v_add_f32_dpp v39, v39, v39 row_bcast:15 row_mask:0xa bank_mask:0xf
    s_nop 1
    v_add_f32_dpp v39, v39, v39 row_bcast:31 row_mask:0xc bank_mask:0xf
    s_nop 1
    v_readlane_b32 s89, v39, 63
    v_lshlrev_b32 v40, 2, v28
    v_add_u32 v41, 32, v40
    v_add_u32 v42, 64, v40
    v_add_u32 v43, 96, v40
    v_rcp_f32 v39, s89
    s_nop 0
    v_mul_f32 v38, v38, v39
    s_nop 1
    ds_bpermute_b32 v44, v40, v38
    ds_bpermute_b32 v45, v41, v38
    ds_bpermute_b32 v46, v42, v38
    ds_bpermute_b32 v47, v43, v38
    s_waitcnt lgkmcnt(0)
    """)
    for e in range(4):
        a(f"v_mul_f32 v{48+e}, v44, v{HO+e}")
    for t in range(1, 4):
        for e in range(4):
            a(f"v_fmac_f32 v{48+e}, v{44+t}, v{HO+4*t+e}")
    a(f"""
    s_nop 1
    v_add_f32_dpp v48, v48, v48 row_ror:8 row_mask:0xf bank_mask:0x3
    v_add_f32_dpp v50, v50, v50 row_ror:8 row_mask:0xf bank_mask:0x3
    v_add_f32_dpp v48, v49, v49 row_ror:8 row_mask:0xf bank_mask:0xc
    v_add_f32_dpp v50, v51, v51 row_ror:8 row_mask:0xf bank_mask:0xc
    s_nop 1
    v_permlane16_swap_b32 v48, v50
    v_add_f32 v48, v48, v50
    v_mov_b32 v49, v48
    s_nop 1
    v_permlane32_swap_b32 v48, v49
    v_add_f32 v48, v48, v49
    v_cvt_pk_bf16_f32 v48, v48, 0
    v_and_b32 v49, 3, v28
    v_lshl_add_u32 v49, v29, 2, v49
    v_lshlrev_b32 v49, 2, v49
    ds_write_b32 v49, v48 offset:{O3_LDS}
    s_waitcnt lgkmcnt(0)
    s_setprio 0
    s_barrier
    s_barrier
    s_cmp_ge_u32 s2, 28
    s_cbranch_scc1 .Lend
    s_barrier
    .Lend:
    """)
    if STAMPS:
        a(f"""
        s_lshl_b32 s3, s2, 4
        s_add_u32 s3, s3, s68
        s_lshl_b32 s3, s3, 8
        s_add_u32 s3, s3, {STAMP_BASE}
        s_cmp_eq_u32 s68, 0
        s_cbranch_scc1 .Lst_h
        v_lshlrev_b32 v3, 2, v1
        buffer_store_dword v7, v3, s[32:35], s3 offen
        s_branch .Lexit
        .Lst_h:
        v_lshlrev_b32 v3, 2, v1
        buffer_store_dword v135, v3, s[32:35], s3 offen
        """)
    a("""
    .Lexit:
    s_endpgm
    """)
    a.raw(kernel_descriptor(KN, 168, 102))
    return a.text()


if __name__ == "__main__":
    if len(sys.argv) > 2 and sys.argv[2] == "stamps":
        STAMPS = True
    for kv in sys.argv[3:]:
        k, v = kv.split("=")
        globals()[k] = eval(v)
    out = sys.argv[1] if len(sys.argv) > 1 else "gated_mix__sliding_block_cached__gqa_block_cached__decode.s"
    open(out, "w").write(gen())
```

```python
import math
import sys

from asmlib import Asm, HEADER, kernel_descriptor
from pieces import reduce16_half

KN = "gated_mix__sliding_block_cached__gqa_block_cached__decode_kernel"

COH = "sc1"
NT = " nt"

QP_BASE = 0
PG_BASE = 65536
Y_BASE = 0x150000
WS_USED = Y_BASE + 256 * 1792

Q_LDS = 0
ML_LDS = 2048
FLAG_LDS = 2304
G_LDS = 2320
O3_LDS = 2432
F_LDS = 2560
O_LDS = 4096
Y_LDS = 24576
LDS_TOTAL = 40960

NWG = 256
EARLY_B0 = False
STREAM_ONLY = False
PRE_B0 = 0
PIPE_POLL = False
POLL_LIMIT = 1 << 17

LOG2E = 1.4426950408889634
CST = LOG2E / 16.0


def f32bits(x):
    import struct
    return struct.unpack("<I", struct.pack("<f", x))[0]


STAMPS = False
STAMP_BASE = 0x400000


def gen():
    a = Asm()
    def stamp(k, vreg=7):
        if STAMPS:
            a(f"""
            s_memrealtime s[0:1]
            s_waitcnt lgkmcnt(0)
            v_writelane_b32 v{vreg}, s0, {k}
            """)
    a.stamp = stamp
    a.raw(HEADER.rstrip())
    a.raw(f"; @launch grid=({NWG},1,1) block=(704,1,1) lds={LDS_TOTAL}")
    a.raw('.amdgcn_target "amdgcn-amd-amdhsa--gfx950"')
    a.raw(".text")
    a.raw(f".globl {KN}")
    a.raw(".p2align 8")
    a.raw(f".type {KN},@function")
    a.raw(f"{KN}:")

    a(f"""
    s_cmp_ge_u32 s2, {NWG}
    s_cbranch_scc1 .Lexit
    s_load_dwordx16 s[4:19], s[0:1], 0
    s_load_dwordx8 s[20:27], s[0:1], 64
    s_load_dwordx4 s[28:31], s[0:1], 96
    v_lshrrev_b32 v3, 6, v0
    v_and_b32 v1, 63, v0
    v_readfirstlane_b32 s68, v3
    v_lshlrev_b32 v2, 4, v1
    """)
    a("""
    s_lshr_b32 s69, s2, 5
    s_and_b32 s70, s2, 31
    s_lshr_b32 s71, s2, 7
    s_and_b32 s72, s2, 127
    """)
    a("""
    s_cmp_eq_u32 s70, 25
    s_cselect_b32 s73, 1, 0
    """)
    a("""
    s_mov_b32 s34, 0x10000000
    s_mov_b32 s35, 0x20000
    s_mov_b32 s58, 256
    s_mov_b32 s59, 0x20000
    s_waitcnt lgkmcnt(0)
    s_mov_b32 s32, s30
    s_mov_b32 s33, s31
    s_mov_b32 s56, s28
    s_mov_b32 s57, s29
    """)
    a("""
    s_add_u32 s74, s69, 8
    s_sub_u32 s76, s70, 25
    s_cmp_le_u32 s70, 25
    s_cselect_b32 s74, s74, s69
    s_cselect_b32 s75, s70, s76
    """)
    a(f"""
    s_lshl_b32 s76, s74, 5
    s_add_u32 s76, s76, s75
    s_mul_i32 s76, s76, 2560
    s_add_u32 s76, s76, {PG_BASE}
    s_lshl_b32 s77, s69, 5
    s_mul_i32 s77, s77, 2560
    s_add_u32 s77, s77, {PG_BASE}
    """)
    a("""
    s_cmp_eq_u32 s68, 0
    s_cbranch_scc1 .Lhelper
    """)

    a(".Lcompute:")
    a("""
    s_sub_u32 s78, s68, 1
    s_mul_i32 s79, s70, 10
    s_add_u32 s79, s79, s78
    s_lshl_b32 s80, s79, 5
    s_sub_u32 s81, s80, 2048
    s_cmpk_lt_u32 s79, 256
    s_cselect_b32 s80, s80, s81
    s_cselect_b64 s[36:37], s[16:17], s[6:7]
    s_cselect_b64 s[40:41], s[18:19], s[8:9]
    s_cselect_b32 s82, 0, 1
    """)
    a("""
    s_mov_b32 s38, 0x2000000
    s_mov_b32 s39, 0x20000
    s_mov_b32 s42, 0x2000000
    s_mov_b32 s43, 0x20000
    s_lshl_b32 s83, s69, 13
    s_add_u32 s83, s83, s80
    s_lshl_b32 s83, s83, 9
    s_and_b32 s84, s73, s82
    """)
    a("v_mov_b32 v7, 0")
    a.stamp(0)
    KB = 8
    VB = 72
    Q = 136
    PS = 144
    S0, S1 = 160, 161
    PL0, PH0, PL1, PH1 = 162, 163, 164, 165
    T0, T1 = 166, 167
    nout = 0
    for t in range(16):
        if t == PRE_B0:
            a("s_barrier")
        if t % 4 == 0:
            a(f"s_add_u32 s85, s83, {t*1024}")
        a(f"buffer_load_dwordx4 v[{KB+4*t}:{KB+4*t+3}], v2, s[36:39], s85 offen offset:{(t%4)*1024}{NT}")
    for t in range(16):
        if t % 4 == 0:
            a(f"s_add_u32 s85, s83, {t*1024}")
        a(f"buffer_load_dwordx4 v[{VB+4*t}:{VB+4*t+3}], v2, s[40:43], s85 offen offset:{(t%4)*1024}{NT}")
    a.stamp(1)
    if STREAM_ONLY:
        a("""
        s_waitcnt vmcnt(0)
        s_cmp_eq_u32 s71, 0
        s_cselect_b64 s[44:45], s[12:13], s[22:23]
        s_mov_b32 s46, 3670016
        s_mov_b32 s47, 0x20000
        s_lshl_b32 s93, s72, 5
        s_and_b32 s94, s78, 7
        s_lshl_b32 s94, s94, 2
        s_add_u32 s93, s93, s94
        s_mul_i32 s93, s93, 896
        """)
        for r in range(4):
            a(f"buffer_load_dwordx4 v[{KB+4*r}:{KB+4*r+3}], v2, s[44:47], s93 offen offset:{r*896}{NT}")
        a("""
        s_waitcnt vmcnt(0)
        s_branch .Lexit
        """)
    a("""
    v_and_b32 v3, 2, v1
    v_cmp_ne_u32 s[86:87], 0, v3
    v_and_b32 v3, 1, v1
    v_cmp_ne_u32 s[88:89], 0, v3
    """)
    a(f"""
    v_mov_b32 v3, {FLAG_LDS}
    s_mov_b32 s90, 0
    .Lc_waitq:
    ds_read_b32 v4, v3
    s_waitcnt lgkmcnt(0)
    v_readfirstlane_b32 s91, v4
    s_cmp_eq_u32 s91, 1
    s_cbranch_scc1 .Lc_gotq
    s_sleep 2
    s_add_u32 s90, s90, 1
    s_cmp_lt_u32 s90, {1<<24}
    s_cbranch_scc1 .Lc_waitq
    .Lc_gotq:
    """)
    a.stamp(2)
    a(f"""
    v_and_b32 v3, 31, v1
    v_lshlrev_b32 v3, 4, v3
    s_lshl_b32 s91, s84, 10
    v_add_u32 v3, s91, v3
    ds_read_b128 v[{Q}:{Q+3}], v3 offset:{Q_LDS}
    ds_read_b128 v[{Q+4}:{Q+7}], v3 offset:{Q_LDS+512}
    s_mov_b32 s92, {f32bits(CST):#x}
    s_waitcnt lgkmcnt(0)
    """)
    for c in range(2):
        a(f"s_waitcnt vmcnt({32 - 8*(c+1)})")
        for ib in range(0, 8, 2):
            accs = [(i, h) for i in (ib, ib + 1) for h in (0, 1)]
            for jj in range(4):
                for (i, h) in accs:
                    t = 8 * c + i
                    r = PS + 2 * i + h
                    if jj == 0:
                        a(f"v_dot2_f32_bf16 v{r}, v{KB+4*t+jj}, v{Q+4*h+jj}, 0")
                    else:
                        a(f"v_dot2c_f32_bf16 v{r}, v{KB+4*t+jj}, v{Q+4*h+jj}")
        a("s_nop 3")
        for ln in reduce16_half(list(range(PS, PS + 16)), [T0, T1], "s[86:87]", "s[88:89]"):
            a(ln)
        a(f"v_mov_b32 v{S0+c}, v{PS}")
    a.stamp(3)
    a("""
    s_cmp_eq_u32 s71, 0
    s_cselect_b64 s[44:45], s[12:13], s[22:23]
    s_mov_b32 s46, 3670016
    s_mov_b32 s47, 0x20000
    s_lshl_b32 s93, s72, 5
    s_and_b32 s94, s78, 7
    s_lshl_b32 s94, s94, 2
    s_add_u32 s93, s93, s94
    s_mul_i32 s93, s93, 896
    """)
    WO = KB
    a("""
    v_cmp_gt_u32 vcc, 56, v1
    v_mov_b32 v5, 0x7f000000
    s_nop 0
    v_cndmask_b32 v5, v5, v2, vcc
    """)
    for r in range(4):
        a(f"buffer_load_dwordx4 v[{WO+4*r}:{WO+4*r+3}], v5, s[44:47], s93 offen offset:{r*896}{NT}")
    M, TA, TB, TC, TD = PS, PS + 1, PS + 2, PS + 3, PS + 4
    NM, P0, P1, PSUM = PS + 5, PS + 6, PS + 7, PS + 8

    def butterfly(op, src, dst):
        L = []
        L.append("s_nop 1")
        L.append(f"{op}_dpp v{TA}, v{src}, v{src} quad_perm:[2,3,0,1] row_mask:0xf bank_mask:0xf")
        L.append("s_nop 1")
        L.append(f"{op}_dpp v{TB}, v{TA}, v{TA} row_shl:4 row_mask:0xf bank_mask:0x5")
        L.append(f"{op}_dpp v{TB}, v{TA}, v{TA} row_shr:4 row_mask:0xf bank_mask:0xa")
        L.append("s_nop 1")
        L.append(f"{op}_dpp v{TC}, v{TB}, v{TB} row_ror:8 row_mask:0xf bank_mask:0xf")
        L.append(f"v_mov_b32 v{TD}, v{TC}")
        L.append("s_nop 1")
        L.append(f"v_permlane32_swap_b32 v{TC}, v{TD}")
        L.append(f"{op} v{dst}, v{TC}, v{TD}")
        return L

    a(f"v_max_f32 v{M}, v{S0}, v{S1}")
    for ln in butterfly("v_max_f32", M, M):
        a(ln)
    a(f"""
    v_mul_f32 v{NM}, s92, v{M}
    v_sub_f32 v{NM}, 0, v{NM}
    v_fma_f32 v{P0}, v{S0}, s92, v{NM}
    v_fma_f32 v{P1}, v{S1}, s92, v{NM}
    v_exp_f32 v{P0}, v{P0}
    v_exp_f32 v{P1}, v{P1}
    s_nop 0
    v_add_f32 v{PSUM}, v{P0}, v{P1}
    v_cvt_pk_bf16_f32 v{PL0}, v{P0}, 0
    v_cvt_pk_bf16_f32 v{PH0}, 0, v{P0}
    v_cvt_pk_bf16_f32 v{PL1}, v{P1}, 0
    v_cvt_pk_bf16_f32 v{PH1}, 0, v{P1}
    """)
    for ln in butterfly("v_add_f32", PSUM, PSUM):
        a(ln)
    a(f"""
    v_sub_f32 v{T0}, 0, v{NM}
    v_mov_b32 v{T1}, v{PSUM}
    """)
    ACC = PS
    for e in range(16):
        a(f"v_mov_b32 v{ACC+e}, 0")
    for t in range(16):
        c, i = t >> 3, t & 7
        a(f"s_waitcnt vmcnt({15 - t + 4})")
        pl, ph = (PL0, PH0) if c == 0 else (PL1, PH1)
        for h in range(2):
            for e in range(4):
                a(f"v_dot2c_f32_bf16_dpp v{ACC+8*h+2*e}, v{pl}, v{VB+4*t+e} row_newbcast:{2*i+h} row_mask:0xf bank_mask:0xf")
                a(f"v_dot2c_f32_bf16_dpp v{ACC+8*h+2*e+1}, v{ph}, v{VB+4*t+e} row_newbcast:{2*i+h} row_mask:0xf bank_mask:0xf")
    a.stamp(4)
    a("s_nop 3")
    for e in range(8):
        a(f"v_permlane32_swap_b32 v{ACC+e}, v{ACC+8+e}")
    for e in range(8):
        a(f"v_add_f32 v{ACC+e}, v{ACC+e}, v{ACC+8+e}")
    a(f"""
    s_lshl_b32 s91, s78, 11
    v_lshlrev_b32 v3, 5, v1
    v_add_u32 v3, s91, v3
    ds_write_b128 v3, v[{ACC}:{ACC+3}] offset:{O_LDS}
    ds_write_b128 v3, v[{ACC+4}:{ACC+7}] offset:{O_LDS+16}
    s_lshl_b32 s91, s78, 4
    v_lshlrev_b32 v4, 3, v1
    v_add_u32 v4, s91, v4
    v_cmp_gt_u32 vcc, 2, v1
    s_and_saveexec_b64 s[94:95], vcc
    ds_write_b64 v4, v[{T0}:{T1}] offset:{ML_LDS}
    s_mov_b64 exec, s[94:95]
    s_waitcnt lgkmcnt(0)
    s_barrier
    """)
    a.stamp(5)
    a("""
    s_cmp_ge_u32 s78, 8
    s_cbranch_scc1 .Lc_skip_to_b3
    """)
    a(f"""
    s_lshr_b32 s91, s78, 2
    s_and_b32 s93, s78, 3
    s_lshl_b32 s94, s91, 10
    s_lshl_b32 s95, s93, 8
    s_add_u32 s94, s94, s95
    v_lshlrev_b32 v3, 2, v1
    v_add_u32 v3, s94, v3
    s_lshl_b32 s95, s91, 3
    v_mov_b32 v4, s95
    """)
    MW = 72
    OW = 92
    for w in range(10):
        a(f"ds_read_b64 v[{MW+2*w}:{MW+2*w+1}], v4 offset:{ML_LDS + 16*w}")
    for w in range(10):
        a(f"ds_read_b32 v{OW+w}, v3 offset:{O_LDS + 2048*w}")
    ML_, MH_, MM_ = 104, 105, 106
    SCW = 108
    OL_, OH_, LL_, LH_ = 120, 121, 122, 123
    a(f"""
    s_cmp_eq_u32 s73, 1
    s_cselect_b64 s[96:97], -1, 0
    s_waitcnt lgkmcnt(0)
    v_max3_f32 v{ML_}, v{MW}, v{MW+2}, v{MW+4}
    v_max3_f32 v{ML_}, v{ML_}, v{MW+6}, v{MW+8}
    v_max_f32 v{ML_}, v{ML_}, v{MW+10}
    v_max3_f32 v{MH_}, v{MW+12}, v{MW+14}, v{MW+16}
    v_max_f32 v{MH_}, v{MH_}, v{MW+18}
    v_max_f32 v{MM_}, v{ML_}, v{MH_}
    v_cndmask_b32 v{ML_}, v{MM_}, v{ML_}, s[96:97]
    v_cndmask_b32 v{MH_}, v{MM_}, v{MH_}, s[96:97]
    """)
    for w in range(10):
        ref = ML_ if w < 6 else MH_
        a(f"v_sub_f32 v{SCW+w}, v{MW+2*w}, v{ref}")
    for w in range(10):
        a(f"v_exp_f32 v{SCW+w}, v{SCW+w}")
    a("s_nop 0")
    a(f"v_mul_f32 v{OL_}, v{SCW}, v{OW}")
    a(f"v_mul_f32 v{LL_}, v{SCW}, v{MW+1}")
    for w in range(1, 6):
        a(f"v_fmac_f32 v{OL_}, v{SCW+w}, v{OW+w}")
        a(f"v_fmac_f32 v{LL_}, v{SCW+w}, v{MW+2*w+1}")
    a(f"v_mul_f32 v{OH_}, v{SCW+6}, v{OW+6}")
    a(f"v_mul_f32 v{LH_}, v{SCW+6}, v{MW+13}")
    for w in range(7, 10):
        a(f"v_fmac_f32 v{OH_}, v{SCW+w}, v{OW+w}")
        a(f"v_fmac_f32 v{LH_}, v{SCW+w}, v{MW+2*w+1}")
    OS_, LS_ = 124, 125
    a(f"""
    v_add_f32 v{OS_}, v{OL_}, v{OH_}
    v_add_f32 v{LS_}, v{LL_}, v{LH_}
    v_cndmask_b32 v{OL_}, v{OS_}, v{OL_}, s[96:97]
    v_cndmask_b32 v{LL_}, v{LS_}, v{LL_}, s[96:97]
    """)

    def canon(r):
        return [f"v_cmp_o_f32 vcc, v{r}, v{r}", f"v_cndmask_b32 v{r}, v126, v{r}, vcc"]

    a("v_mov_b32 v126, 0x7fc00000")
    for r in (OL_, OH_, ML_, LL_, MH_, LH_):
        for ln in canon(r):
            a(ln)
    MLP = 128
    a(f"""
    s_mul_i32 s95, s91, 1280
    s_lshl_b32 s98, s93, 8
    s_add_u32 s95, s95, s98
    v_lshlrev_b32 v5, 2, v1
    v_add_u32 v5, s95, v5
    buffer_store_dword v{OL_}, v5, s[32:35], s76 offen {COH}
    v_mov_b32 v{MLP}, v{ML_}
    v_mov_b32 v{MLP+1}, v{LL_}
    s_mul_i32 s98, s91, 1280
    v_mov_b32 v6, s98
    s_cmp_eq_u32 s93, 0
    s_cselect_b64 s[98:99], 1, 0
    s_mov_b64 exec, s[98:99]
    s_cbranch_execz .Lc_noml0
    buffer_store_dwordx2 v[{MLP}:{MLP+1}], v6, s[32:35], s76 offen offset:1024 {COH}
    .Lc_noml0:
    s_mov_b64 exec, -1
    s_cmp_eq_u32 s73, 1
    s_cbranch_scc0 .Lc_noseg1
    buffer_store_dword v{OH_}, v5, s[32:35], s77 offen {COH}
    v_mov_b32 v{MLP+2}, v{MH_}
    v_mov_b32 v{MLP+3}, v{LH_}
    s_mov_b64 exec, s[98:99]
    s_cbranch_execz .Lc_noml1
    buffer_store_dwordx2 v[{MLP+2}:{MLP+3}], v6, s[32:35], s77 offen offset:1024 {COH}
    .Lc_noml1:
    s_mov_b64 exec, -1
    .Lc_noseg1:
    """)
    a.stamp(6)
    a.stamp(6)
    a(f"""
    s_barrier
    s_lshl_b32 s91, s78, 4
    s_add_u32 s91, s91, {O3_LDS}
    v_mov_b32 v3, s91
    ds_read_b128 v[72:75], v3
    s_waitcnt lgkmcnt(0)
    v_readfirstlane_b32 s94, v72
    v_readfirstlane_b32 s96, v73
    v_readfirstlane_b32 s98, v74
    v_readfirstlane_b32 s100, v75
    s_nop 3
    s_lshl_b32 s95, s94, 16
    s_lshl_b32 s97, s96, 16
    s_lshl_b32 s99, s98, 16
    s_lshl_b32 s101, s100, 16
    """)
    a.stamp(7)
    YA = 96
    a("s_waitcnt vmcnt(0)")
    for r in range(4):
        slo, shi = 94 + 2 * r, 95 + 2 * r
        for e in range(4):
            if r == 0:
                a(f"v_dot2_f32_bf16 v{YA+2*e}, v{WO+4*r+e}, s{slo}, 0")
                a(f"v_dot2_f32_bf16 v{YA+2*e+1}, v{WO+4*r+e}, s{shi}, 0")
            else:
                a(f"v_dot2_f32_bf16 v{YA+2*e}, v{WO+4*r+e}, s{slo}, v{YA+2*e}")
                a(f"v_dot2_f32_bf16 v{YA+2*e+1}, v{WO+4*r+e}, s{shi}, v{YA+2*e+1}")
    a(f"""
    s_lshl_b32 s91, s78, 11
    v_lshlrev_b32 v3, 5, v1
    v_add_u32 v3, s91, v3
    s_nop 1
    ds_write_b128 v3, v[{YA}:{YA+3}] offset:{Y_LDS}
    ds_write_b128 v3, v[{YA+4}:{YA+7}] offset:{Y_LDS+16}
    s_waitcnt lgkmcnt(0)
    s_branch .Lc_b3
    .Lc_skip_to_b3:
    s_barrier
    .Lc_b3:
    s_barrier
    """)
    a.stamp(8)
    a("""
    s_cmp_ge_u32 s78, 7
    s_cbranch_scc1 .Lc_after_y
    """)
    a(f"""
    s_lshl_b32 s91, s78, 8
    v_lshlrev_b32 v3, 2, v1
    v_add_u32 v3, s91, v3
    """)
    for w in range(8):
        a(f"ds_read_b32 v{72+w}, v3 offset:{Y_LDS + 2048*w}")
    a(f"""
    s_mul_i32 s93, s2, 1792
    s_add_u32 s93, s93, {Y_BASE}
    v_mov_b32 v126, 0x7fc00000
    s_waitcnt lgkmcnt(0)
    v_add_f32 v72, v72, v73
    v_add_f32 v74, v74, v75
    v_add_f32 v76, v76, v77
    v_add_f32 v78, v78, v79
    v_add_f32 v72, v72, v74
    v_add_f32 v76, v76, v78
    v_add_f32 v72, v72, v76
    v_cmp_o_f32 vcc, v72, v72
    v_cndmask_b32 v72, v126, v72, vcc
    buffer_store_dword v72, v3, s[32:35], s93 offen {COH}
    .Lc_after_y:
    """)
    a.stamp(9)
    a(f"""
    s_cmp_ge_u32 s2, 28
    s_cbranch_scc1 .Lend
    s_cmp_ge_u32 s78, 8
    s_cbranch_scc1 .Lc_skip_to_b4
    """)
    ZA, ZB = 72, 76
    a(f"""
    v_lshrrev_b32 v3, 2, v1
    v_mul_u32_u24 v3, 1792, v3
    v_and_b32 v4, 3, v1
    v_lshlrev_b32 v4, 4, v4
    v_add_u32 v3, v3, v4
    s_mul_i32 s91, s78, {32*1792}
    s_lshl_b32 s93, s2, 6
    s_add_u32 s91, s91, s93
    s_add_u32 s91, s91, {Y_BASE}
    s_add_u32 s93, s91, {16*1792}
    s_mov_b32 s90, 0
    .Lc_poll4:
    buffer_load_dwordx4 v[{ZA}:{ZA+3}], v3, s[32:35], s91 offen {COH}
    buffer_load_dwordx4 v[{ZB}:{ZB+3}], v3, s[32:35], s93 offen {COH}
    s_waitcnt vmcnt(0)
    v_max3_u32 v80, v{ZA}, v{ZA+1}, v{ZA+2}
    v_max3_u32 v80, v80, v{ZA+3}, v{ZB}
    v_max3_u32 v80, v80, v{ZB+1}, v{ZB+2}
    v_max_u32 v80, v80, v{ZB+3}
    v_cmp_eq_u32 vcc, -1, v80
    s_cbranch_vccz .Lc_got4
    s_add_u32 s90, s90, 1
    s_cmp_lt_u32 s90, {POLL_LIMIT}
    s_cbranch_scc1 .Lc_poll4
    .Lc_got4:
    v_add_f32 v{ZA}, v{ZA}, v{ZB}
    v_add_f32 v{ZA+1}, v{ZA+1}, v{ZB+1}
    v_add_f32 v{ZA+2}, v{ZA+2}, v{ZB+2}
    v_add_f32 v{ZA+3}, v{ZA+3}, v{ZB+3}
    s_nop 1
    v_permlane16_swap_b32 v{ZA}, v{ZA+1}
    v_permlane16_swap_b32 v{ZA+2}, v{ZA+3}
    v_add_f32 v{ZA}, v{ZA}, v{ZA+1}
    v_add_f32 v{ZA+2}, v{ZA+2}, v{ZA+3}
    s_nop 1
    v_permlane32_swap_b32 v{ZA}, v{ZA+2}
    v_add_f32 v{ZA}, v{ZA}, v{ZA+2}
    s_nop 1
    v_add_f32_dpp v{ZB}, v{ZA}, v{ZA} row_shl:4 row_mask:0xf bank_mask:0x5
    v_add_f32_dpp v{ZB}, v{ZA}, v{ZA} row_shr:4 row_mask:0xf bank_mask:0xa
    s_nop 1
    v_add_f32_dpp v{ZA}, v{ZB}, v{ZB} row_ror:8 row_mask:0xf bank_mask:0xf
    """)
    a.stamp(10)
    a(f"""
    v_lshrrev_b32 v4, 4, v1
    v_and_b32 v5, 3, v1
    v_lshl_add_u32 v4, v5, 2, v4
    v_lshlrev_b32 v4, 2, v4
    s_lshl_b32 s91, s78, 6
    v_add_u32 v4, s91, v4
    ds_write_b32 v4, v{ZA} offset:{F_LDS}
    s_waitcnt lgkmcnt(0)
    .Lc_skip_to_b4:
    s_barrier
    s_cmp_lg_u32 s78, 0
    s_cbranch_scc1 .Lend
    """)
    a.stamp(11)
    a(f"""
    v_lshlrev_b32 v3, 2, v1
    v_cmp_gt_u32 vcc, 16, v1
    s_and_saveexec_b64 s[96:97], vcc
    """)
    for w in range(8):
        a(f"ds_read_b32 v{8+w}, v3 offset:{F_LDS + 64*w}")
    a(f"""
    v_mov_b32 v4, {G_LDS}
    ds_read_b64 v[16:17], v4
    s_mov_b32 s60, s26
    s_mov_b32 s61, s27
    s_mov_b32 s62, 896
    s_mov_b32 s63, 0x20000
    s_waitcnt lgkmcnt(0)
    v_add_f32 v8, v8, v9
    v_add_f32 v10, v10, v11
    v_add_f32 v12, v12, v13
    v_add_f32 v14, v14, v15
    v_add_f32 v8, v8, v10
    v_add_f32 v12, v12, v14
    """)

    def rbf(r, t):
        return [f"v_cvt_pk_bf16_f32 v{t}, v{r}, v{r}", f"v_lshlrev_b32 v{r}, 16, v{t}"]

    for ln in rbf(8, 18) + rbf(12, 19):
        a(ln)
    a("""
    v_mul_f32 v8, v8, v16
    v_mul_f32 v12, v12, v17
    """)
    for ln in rbf(8, 18) + rbf(12, 19):
        a(ln)
    a(f"""
    v_add_f32 v8, v8, v12
    v_cvt_pk_bf16_f32 v8, v8, v8
    v_lshlrev_b32 v3, 1, v1
    s_lshl_b32 s91, s2, 5
    buffer_store_short v8, v3, s[60:63], s91 offen
    s_mov_b64 exec, s[96:97]
    s_branch .Lend
    """)

    a(".Lhelper:")
    a("s_setprio 3")
    a("v_mov_b32 v135, 0")
    a.stamp(0, 135)
    a(f"""
    s_lshr_b32 s78, s72, 1
    s_and_b32 s79, s2, 1
    s_lshl_b32 s80, s71, 1
    s_add_u32 s80, s80, s79
    s_lshl_b32 s80, s80, 12
    s_lshl_b32 s81, s78, 6
    s_add_u32 s80, s80, s81
    s_lshl_b32 s80, s80, 2
    s_add_u32 s80, s80, {QP_BASE}
    """)
    a(f"""
    v_mov_b32 v3, {FLAG_LDS}
    v_mov_b32 v4, 0
    ds_write_b32 v3, v4
    {"s_waitcnt lgkmcnt(0)" if EARLY_B0 else ""}
    {"s_barrier" if EARLY_B0 else ""}
    v_mov_b32 v4, -1
    v_mov_b32 v5, -1
    v_mov_b32 v6, -1
    v_mov_b32 v7, -1
    """)
    nst = 0
    a(f"""
    v_cmp_gt_u32 vcc, 16, v1
    s_and_saveexec_b64 s[82:83], vcc
    buffer_store_dwordx4 v[4:7], v2, s[32:35], s80 offen {COH}
    s_mov_b64 exec, s[82:83]
    """)
    nst += 1
    a(f"""
    buffer_store_dwordx4 v[4:7], v2, s[32:35], s76 offen {COH}
    buffer_store_dwordx4 v[4:7], v2, s[32:35], s76 offen offset:1024 {COH}
    v_cmp_gt_u32 vcc, 32, v1
    s_and_saveexec_b64 s[82:83], vcc
    buffer_store_dwordx4 v[4:7], v2, s[32:35], s76 offen offset:2048 {COH}
    s_mov_b64 exec, s[82:83]
    """)
    nst += 3
    a(f"""
    s_mul_i32 s84, s2, 1792
    s_add_u32 s84, s84, {Y_BASE}
    buffer_store_dwordx4 v[4:7], v2, s[32:35], s84 offen {COH}
    v_cmp_gt_u32 vcc, 48, v1
    s_and_saveexec_b64 s[82:83], vcc
    buffer_store_dwordx4 v[4:7], v2, s[32:35], s84 offen offset:1024 {COH}
    s_mov_b64 exec, s[82:83]
    """)
    nst += 2
    a(f"""
    s_cmp_eq_u32 s73, 1
    s_cbranch_scc0 .Lh_noclr1
    buffer_store_dwordx4 v[4:7], v2, s[32:35], s77 offen {COH}
    buffer_store_dwordx4 v[4:7], v2, s[32:35], s77 offen offset:1024 {COH}
    v_cmp_gt_u32 vcc, 32, v1
    s_and_saveexec_b64 s[82:83], vcc
    buffer_store_dwordx4 v[4:7], v2, s[32:35], s77 offen offset:2048 {COH}
    s_mov_b64 exec, s[82:83]
    .Lh_noclr1:
    """)
    a("""
    s_mov_b32 s52, s4
    s_mov_b32 s53, s5
    s_mov_b32 s54, 896
    s_mov_b32 s55, 0x20000
    s_cmp_eq_u32 s71, 0
    s_cselect_b64 s[48:49], s[10:11], s[20:21]
    s_mov_b32 s50, 3670016
    s_mov_b32 s51, 0x20000
    s_mov_b32 s64, s24
    s_mov_b32 s65, s25
    s_mov_b32 s66, 896
    s_mov_b32 s67, 0x20000
    """)
    XR = 120
    WR = 8
    a(f"""
    v_lshrrev_b32 v3, 3, v1
    v_mul_u32_u24 v134, 56, v3
    s_mul_i32 s85, s79, 448
    """)
    for u in range(7):
        a(f"buffer_load_dwordx2 v[{XR+2*u}:{XR+2*u+1}], v134, s[52:55], s85 offen offset:{8*u}")
    a(f"""
    v_lshrrev_b32 v3, 3, v1
    s_mov_b32 s86, {28*8192}
    v_mul_lo_u32 v3, v3, s86
    v_and_b32 v9, 7, v1
    v_lshl_add_u32 v3, v9, 4, v3
    s_mul_i32 s86, s79, {224*8192}
    s_lshl_b32 s87, s78, 7
    s_add_u32 s86, s86, s87
    """)
    for t in range(28):
        a(f"buffer_load_dwordx4 v[{WR+4*t}:{WR+4*t+3}], v3, s[48:51], s86 offen{NT}")
        if t != 27:
            a("s_add_u32 s86, s86, 8192")
    GX, GW = 136, 140
    a(f"""
    buffer_load_dwordx4 v[{GX}:{GX+3}], v2, s[52:55], 0 offen
    buffer_load_dwordx4 v[{GW}:{GW+3}], v2, s[64:67], 0 offen
    s_waitcnt lgkmcnt(0)
    {"" if EARLY_B0 else "s_barrier"}
    """)
    a.stamp(1, 135)
    if STREAM_ONLY:
        a("""
        s_waitcnt vmcnt(0)
        s_branch .Lexit
        """)
    a(f"""
    s_waitcnt vmcnt(37)
    v_mov_b32 v4, 1
    s_and_b32 s89, s2, 3
    s_lshl_b32 s89, s89, 6
    v_mov_b32 v5, 0
    s_mov_b64 exec, 1
    buffer_atomic_add v4, v5, s[56:59], s89 offen
    s_mov_b64 exec, -1
    v_and_b32 v162, 3, v1
    v_lshlrev_b32 v162, 6, v162
    buffer_load_dword v163, v162, s[56:59], 0 offen {COH}
    """)
    ACCQ = 144
    XL, XH = 152, 153
    for t in range(28):
        if t % 4 == 0:
            a(f"s_waitcnt vmcnt({28 - (t+4) + 4})")
        u = t >> 1
        xr = XR + u
        if t % 2 == 0:
            a(f"v_and_b32 v{XL}, 0xffff, v{xr}")
            a(f"v_lshlrev_b32 v{XH}, 16, v{xr}")
        else:
            a(f"v_lshrrev_b32 v{XL}, 16, v{xr}")
            a(f"v_and_b32 v{XH}, 0xffff0000, v{xr}")
        a("s_nop 0")
        for e in range(4):
            if t == 0:
                a(f"v_dot2_f32_bf16 v{ACCQ+2*e}, v{WR+4*t+e}, v{XL}, 0")
                a(f"v_dot2_f32_bf16 v{ACCQ+2*e+1}, v{WR+4*t+e}, v{XH}, 0")
            else:
                a(f"v_dot2c_f32_bf16 v{ACCQ+2*e}, v{WR+4*t+e}, v{XL}")
                a(f"v_dot2c_f32_bf16 v{ACCQ+2*e+1}, v{WR+4*t+e}, v{XH}")
    a.stamp(2, 135)
    a("s_nop 3")
    for k in range(4):
        x, y = ACCQ + 2 * k, ACCQ + 2 * k + 1
        a(f"v_add_f32_dpp v{x}, v{x}, v{x} row_ror:8 row_mask:0xf bank_mask:0x3")
    for k in range(4):
        x, y = ACCQ + 2 * k, ACCQ + 2 * k + 1
        a(f"v_add_f32_dpp v{x}, v{y}, v{y} row_ror:8 row_mask:0xf bank_mask:0xc")
    a(f"""
    s_nop 1
    v_permlane16_swap_b32 v{ACCQ}, v{ACCQ+2}
    v_permlane16_swap_b32 v{ACCQ+4}, v{ACCQ+6}
    v_add_f32 v{ACCQ}, v{ACCQ}, v{ACCQ+2}
    v_add_f32 v{ACCQ+4}, v{ACCQ+4}, v{ACCQ+6}
    s_nop 1
    v_permlane32_swap_b32 v{ACCQ}, v{ACCQ+4}
    v_add_f32 v{ACCQ}, v{ACCQ}, v{ACCQ+4}
    v_mov_b32 v ACCT, 0x7fc00000
    """.replace("v ACCT", "v154"))
    a(f"""
    v_cmp_o_f32 vcc, v{ACCQ}, v{ACCQ}
    v_cndmask_b32 v{ACCQ}, v154, v{ACCQ}, vcc
    v_and_b32 v3, 7, v1
    v_lshrrev_b32 v9, 3, v1
    v_lshl_add_u32 v3, v3, 3, v9
    v_lshlrev_b32 v3, 2, v3
    buffer_store_dword v{ACCQ}, v3, s[32:35], s80 offen {COH}
    """)
    a(f"""
    s_mov_b32 s90, 0
    v_and_b32 v5, 3, v1
    v_lshlrev_b32 v5, 6, v5
    s_waitcnt vmcnt(1)
    v_mov_b32 v4, v163
    s_branch .Lh_chkinit
    .Lh_pollinit:
    buffer_load_dword v4, v5, s[56:59], 0 offen {COH}
    s_waitcnt vmcnt(0)
    .Lh_chkinit:
    s_nop 1
    v_readlane_b32 s91, v4, 0
    v_readlane_b32 s92, v4, 1
    v_readlane_b32 s93, v4, 2
    v_readlane_b32 s94, v4, 3
    s_nop 3
    s_add_u32 s91, s91, s92
    s_add_u32 s93, s93, s94
    s_add_u32 s91, s91, s93
    s_cmp_ge_u32 s91, {NWG}
    s_cbranch_scc1 .Lh_gotinit
    s_sleep 1
    s_add_u32 s90, s90, 1
    s_cmp_lt_u32 s90, {POLL_LIMIT}
    s_cbranch_scc1 .Lh_pollinit
    .Lh_gotinit:
    """)
    a.stamp(4, 135)
    Qa, Qb, Qc, Qd = 8, 12, 16, 20

    def fetch_q(seg, goff_sgpr):
        lab = a.label("Lh_pollq")
        labd = a.label("Lh_gotq")
        a(f"""
        s_mov_b32 s90, 0
        s_add_u32 s92, {goff_sgpr}, 16384
        {lab}:
        buffer_load_dwordx4 v[{Qa}:{Qa+3}], v2, s[32:35], {goff_sgpr} offen {COH}
        buffer_load_dwordx4 v[{Qb}:{Qb+3}], v2, s[32:35], {goff_sgpr} offen offset:1024 {COH}
        buffer_load_dwordx4 v[{Qc}:{Qc+3}], v2, s[32:35], s92 offen {COH}
        buffer_load_dwordx4 v[{Qd}:{Qd+3}], v2, s[32:35], s92 offen offset:1024 {COH}
        s_waitcnt vmcnt(0)
        v_max3_u32 v24, v{Qa}, v{Qa+1}, v{Qa+2}
        v_max3_u32 v24, v24, v{Qa+3}, v{Qb}
        v_max3_u32 v24, v24, v{Qb+1}, v{Qb+2}
        v_max3_u32 v24, v24, v{Qb+3}, v{Qc}
        v_max3_u32 v24, v24, v{Qc+1}, v{Qc+2}
        v_max3_u32 v24, v24, v{Qc+3}, v{Qd}
        v_max3_u32 v24, v24, v{Qd+1}, v{Qd+2}
        v_max_u32 v24, v24, v{Qd+3}
        v_cmp_eq_u32 vcc, -1, v24
        s_cbranch_vccz {labd}
        s_sleep 1
        s_add_u32 s90, s90, 1
        s_cmp_lt_u32 s90, {POLL_LIMIT}
        s_cbranch_scc1 {lab}
        {labd}:
        """)
        for e in range(4):
            a(f"v_add_f32 v{Qa+e}, v{Qa+e}, v{Qc+e}")
            a(f"v_add_f32 v{Qb+e}, v{Qb+e}, v{Qd+e}")
        a(f"""
        v_cvt_pk_bf16_f32 v24, v{Qa}, v{Qa+1}
        v_cvt_pk_bf16_f32 v25, v{Qa+2}, v{Qa+3}
        v_cvt_pk_bf16_f32 v26, v{Qb}, v{Qb+1}
        v_cvt_pk_bf16_f32 v27, v{Qb+2}, v{Qb+3}
        v_lshlrev_b32 v28, 3, v1
        s_nop 0
        ds_write_b64 v28, v[24:25] offset:{Q_LDS + seg*1024}
        ds_write_b64 v28, v[26:27] offset:{Q_LDS + seg*1024 + 512}
        """)

    a(f"""
    s_lshr_b32 s91, s74, 3
    s_lshl_b32 s91, s91, 15
    s_lshl_b32 s93, s69, 11
    s_add_u32 s91, s91, s93
    s_add_u32 s91, s91, {QP_BASE}
    """)
    fetch_q(0, "s91")
    a(f"""
    s_cmp_eq_u32 s73, 1
    s_cbranch_scc0 .Lh_noq1
    s_lshl_b32 s91, s69, 11
    s_add_u32 s91, s91, {QP_BASE}
    """)
    fetch_q(1, "s91")
    a.stamp(5, 135)
    a(f"""
    .Lh_noq1:
    s_waitcnt lgkmcnt(0)
    v_mov_b32 v3, {FLAG_LDS}
    v_mov_b32 v4, 1
    ds_write_b32 v3, v4
    """)
    GA = 156
    a(f"s_waitcnt vmcnt(0)")
    a(f"v_mov_b32 v{GA}, 0")
    for e in range(4):
        a(f"""
        v_lshlrev_b32 v157, 16, v{GX+e}
        v_and_b32 v158, 0xffff0000, v{GX+e}
        v_lshlrev_b32 v159, 16, v{GW+e}
        v_and_b32 v160, 0xffff0000, v{GW+e}
        v_mul_f32 v157, v157, v159
        v_mul_f32 v158, v158, v160
        v_cvt_pk_bf16_f32 v157, v157, v158
        s_nop 0
        v_lshlrev_b32 v158, 16, v157
        v_and_b32 v159, 0xffff0000, v157
        v_add_f32 v{GA}, v{GA}, v158
        v_add_f32 v{GA}, v{GA}, v159
        """)
    a("s_nop 1")
    for sh in (1, 2, 4, 8):
        a(f"v_add_f32_dpp v{GA}, v{GA}, v{GA} row_shr:{sh} row_mask:0xf bank_mask:0xf bound_ctrl:0")
        a("s_nop 1")
    a(f"v_add_f32_dpp v{GA}, v{GA}, v{GA} row_bcast:15 row_mask:0xa bank_mask:0xf")
    a("s_nop 1")
    a(f"v_add_f32_dpp v{GA}, v{GA}, v{GA} row_bcast:31 row_mask:0xc bank_mask:0xf")
    a("s_nop 1")
    a(f"""
    v_cvt_pk_bf16_f32 v157, v{GA}, v{GA}
    v_lshlrev_b32 v157, 16, v157
    s_mov_b32 s88, {f32bits(-LOG2E):#x}
    v_mul_f32 v157, s88, v157
    v_exp_f32 v157, v157
    s_nop 0
    v_add_f32 v157, 1.0, v157
    v_rcp_f32 v157, v157
    s_nop 0
    v_cvt_pk_bf16_f32 v157, v157, v157
    v_lshlrev_b32 v160, 16, v157
    v_sub_f32 v161, 1.0, v160
    v_cvt_pk_bf16_f32 v161, v161, v161
    v_lshlrev_b32 v161, 16, v161
    v_mov_b32 v3, {G_LDS}
    v_cmp_eq_u32 vcc, 63, v1
    s_and_saveexec_b64 s[82:83], vcc
    ds_write_b64 v3, v[160:161]
    s_mov_b64 exec, s[82:83]
    """)
    a.stamp(3, 135)
    a("""
    s_waitcnt lgkmcnt(0)
    s_barrier
    """)
    HO = 8
    HM, HL = 24, 25
    a(f"""
    s_lshr_b32 s78, s72, 3
    s_lshr_b32 s79, s78, 1
    s_and_b32 s80, s78, 1
    s_and_b32 s81, s72, 7
    s_lshl_b32 s81, s81, 5
    s_lshl_b32 s82, s71, 3
    s_add_u32 s82, s82, s79
    s_cmp_eq_u32 s71, 0
    s_cselect_b32 s83, 7, 26
    s_lshl_b32 s84, s82, 6
    s_add_u32 s84, s84, s80
    s_mul_i32 s84, s84, 1280
    s_add_u32 s84, s84, {PG_BASE}
    s_lshl_b32 s85, s81, 2
    s_add_u32 s85, s85, s84
    v_lshrrev_b32 v28, 3, v1
    v_and_b32 v29, 7, v1
    """)
    for t in range(4):
        a(f"""
        v_add_u32 v30, {8*t}, v28
        v_cmp_gt_u32 vcc, s83, v30
        s_nop 1
        v_cndmask_b32 v30, 0, v30, vcc
        v_mul_u32_u24 v{32+t}, 2560, v30
        v_lshl_add_u32 v{32+t}, v29, 4, v{32+t}
        """)
    a(f"""
    v_cmp_gt_u32 s[86:87], s83, v1
    s_nop 1
    v_cndmask_b32 v30, 0, v1, s[86:87]
    v_mul_u32_u24 v36, 2560, v30
    s_mov_b32 s90, 0
    """)
    HB = 52
    def p3_issue(base):
        for t in range(4):
            a(f"buffer_load_dwordx4 v[{base+4*t}:{base+4*t+3}], v{32+t}, s[32:35], s85 offen {COH}")
        a(f"buffer_load_dwordx2 v[{base+16}:{base+17}], v36, s[32:35], s84 offen offset:1024 {COH}")
    def p3_check(base):
        a(f"""
        v_max3_u32 v30, v{base}, v{base+1}, v{base+2}
        v_max3_u32 v31, v{base+3}, v{base+4}, v{base+5}
        v_max3_u32 v30, v30, v{base+6}, v{base+7}
        v_max3_u32 v31, v31, v{base+8}, v{base+9}
        v_max3_u32 v30, v30, v{base+10}, v{base+11}
        v_max3_u32 v31, v31, v{base+12}, v{base+13}
        v_max3_u32 v30, v30, v{base+14}, v{base+15}
        v_max3_u32 v31, v31, v{base+16}, v{base+17}
        v_max_u32 v30, v30, v31
        v_cmp_eq_u32 vcc, -1, v30
        """)
    if PIPE_POLL:
        P1, P2 = 52, 70
        p3_issue(P1)
        a("s_sleep 12")
        a(".Lh_poll3:")
        p3_issue(P2)
        a("s_waitcnt vmcnt(5)")
        p3_check(P1)
        a("s_cbranch_vccz .Lh_got3a")
        p3_issue(P1)
        a("s_waitcnt vmcnt(5)")
        p3_check(P2)
        a("s_cbranch_vccz .Lh_got3b")
        a(f"""
        s_add_u32 s90, s90, 1
        s_cmp_lt_u32 s90, {POLL_LIMIT}
        s_cbranch_scc1 .Lh_poll3
        .Lh_got3a:
        """)
        for k in range(18):
            a(f"v_mov_b32 v{HO+k}, v{P1+k}")
        a("s_branch .Lh_got3")
        a(".Lh_got3b:")
        for k in range(18):
            a(f"v_mov_b32 v{HO+k}, v{P2+k}")
        a(".Lh_got3:")
    else:
        a(".Lh_poll3:")
        p3_issue(HO)
        a("s_waitcnt vmcnt(0)")
        p3_check(HO)
        a(f"""
        s_cbranch_vccz .Lh_got3
        s_add_u32 s90, s90, 1
        s_cmp_lt_u32 s90, {POLL_LIMIT}
        s_cbranch_scc1 .Lh_poll3
        .Lh_got3:
        """)
    a(f"""
    v_mov_b32 v37, 0xff800000
    v_cndmask_b32 v{HM}, v37, v{HM}, s[86:87]
    v_cndmask_b32 v{HL}, 0, v{HL}, s[86:87]
    v_mov_b32 v38, v{HM}
    s_nop 1
    v_max_f32_dpp v38, v38, v38 row_shr:1 row_mask:0xf bank_mask:0xf
    s_nop 1
    v_max_f32_dpp v38, v38, v38 row_shr:2 row_mask:0xf bank_mask:0xf
    s_nop 1
    v_max_f32_dpp v38, v38, v38 row_shr:4 row_mask:0xf bank_mask:0xf
    s_nop 1
    v_max_f32_dpp v38, v38, v38 row_shr:8 row_mask:0xf bank_mask:0xf
    s_nop 1
    v_max_f32_dpp v38, v38, v38 row_bcast:15 row_mask:0xa bank_mask:0xf
    s_nop 1
    v_max_f32_dpp v38, v38, v38 row_bcast:31 row_mask:0xc bank_mask:0xf
    s_nop 1
    v_readlane_b32 s88, v38, 63
    s_nop 3
    v_subrev_f32 v38, s88, v{HM}
    v_exp_f32 v38, v38
    s_nop 0
    v_mul_f32 v39, v38, v{HL}
    s_nop 1
    v_add_f32_dpp v39, v39, v39 row_shr:1 row_mask:0xf bank_mask:0xf bound_ctrl:0
    s_nop 1
    v_add_f32_dpp v39, v39, v39 row_shr:2 row_mask:0xf bank_mask:0xf bound_ctrl:0
    s_nop 1
    v_add_f32_dpp v39, v39, v39 row_shr:4 row_mask:0xf bank_mask:0xf bound_ctrl:0
    s_nop 1
    v_add_f32_dpp v39, v39, v39 row_shr:8 row_mask:0xf bank_mask:0xf bound_ctrl:0
    s_nop 1
    v_add_f32_dpp v39, v39, v39 row_bcast:15 row_mask:0xa bank_mask:0xf
    s_nop 1
    v_add_f32_dpp v39, v39, v39 row_bcast:31 row_mask:0xc bank_mask:0xf
    s_nop 1
    v_readlane_b32 s89, v39, 63
    v_lshlrev_b32 v40, 2, v28
    v_add_u32 v41, 32, v40
    v_add_u32 v42, 64, v40
    v_add_u32 v43, 96, v40
    v_rcp_f32 v39, s89
    s_nop 0
    v_mul_f32 v38, v38, v39
    s_nop 1
    ds_bpermute_b32 v44, v40, v38
    ds_bpermute_b32 v45, v41, v38
    ds_bpermute_b32 v46, v42, v38
    ds_bpermute_b32 v47, v43, v38
    s_waitcnt lgkmcnt(0)
    """)
    for e in range(4):
        a(f"v_mul_f32 v{48+e}, v44, v{HO+e}")
    for t in range(1, 4):
        for e in range(4):
            a(f"v_fmac_f32 v{48+e}, v{44+t}, v{HO+4*t+e}")
    a(f"""
    s_nop 1
    v_add_f32_dpp v48, v48, v48 row_ror:8 row_mask:0xf bank_mask:0x3
    v_add_f32_dpp v50, v50, v50 row_ror:8 row_mask:0xf bank_mask:0x3
    v_add_f32_dpp v48, v49, v49 row_ror:8 row_mask:0xf bank_mask:0xc
    v_add_f32_dpp v50, v51, v51 row_ror:8 row_mask:0xf bank_mask:0xc
    s_nop 1
    v_permlane16_swap_b32 v48, v50
    v_add_f32 v48, v48, v50
    v_mov_b32 v49, v48
    s_nop 1
    v_permlane32_swap_b32 v48, v49
    v_add_f32 v48, v48, v49
    v_cvt_pk_bf16_f32 v48, v48, 0
    v_and_b32 v49, 3, v28
    v_lshl_add_u32 v49, v29, 2, v49
    v_lshlrev_b32 v49, 2, v49
    ds_write_b32 v49, v48 offset:{O3_LDS}
    s_waitcnt lgkmcnt(0)
    s_setprio 0
    s_barrier
    s_barrier
    s_cmp_ge_u32 s2, 28
    s_cbranch_scc1 .Lend
    s_barrier
    .Lend:
    """)
    if STAMPS:
        a(f"""
        s_lshl_b32 s3, s2, 4
        s_add_u32 s3, s3, s68
        s_lshl_b32 s3, s3, 8
        s_add_u32 s3, s3, {STAMP_BASE}
        s_cmp_eq_u32 s68, 0
        s_cbranch_scc1 .Lst_h
        v_lshlrev_b32 v3, 2, v1
        buffer_store_dword v7, v3, s[32:35], s3 offen
        s_branch .Lexit
        .Lst_h:
        v_lshlrev_b32 v3, 2, v1
        buffer_store_dword v135, v3, s[32:35], s3 offen
        """)
    a("""
    .Lexit:
    s_endpgm
    """)
    a.raw(kernel_descriptor(KN, 168, 102))
    return a.text()


if __name__ == "__main__":
    if len(sys.argv) > 2 and sys.argv[2] == "stamps":
        STAMPS = True
    for kv in sys.argv[3:]:
        k, v = kv.split("=")
        globals()[k] = eval(v)
    out = sys.argv[1] if len(sys.argv) > 1 else "gated_mix__sliding_block_cached__gqa_block_cached__decode.s"
    open(out, "w").write(gen())
```

```python
import math
import sys

from asmlib import Asm, HEADER, kernel_descriptor
from pieces import reduce16_half

KN = "gated_mix__sliding_block_cached__gqa_block_cached__decode_kernel"

COH = "sc1"
NT = " nt"

QP_BASE = 0
PG_BASE = 65536
Y_BASE = 0x150000
WS_USED = Y_BASE + 256 * 1792

Q_LDS = 0
ML_LDS = 2048
FLAG_LDS = 2304
G_LDS = 2320
O3_LDS = 2432
F_LDS = 2560
O_LDS = 4096
Y_LDS = 24576
LDS_TOTAL = 40960

NWG = 256
EARLY_B0 = False
STREAM_ONLY = False
PRE_B0 = 0
PIPE_POLL = False
WO_MASK = True
PRE_POLL = False
POLL_LIMIT = 1 << 17

LOG2E = 1.4426950408889634
CST = LOG2E / 16.0


def f32bits(x):
    import struct
    return struct.unpack("<I", struct.pack("<f", x))[0]


STAMPS = False
STAMP_BASE = 0x400000


def gen():
    a = Asm()
    def stamp(k, vreg=7):
        if STAMPS:
            a(f"""
            s_memrealtime s[0:1]
            s_waitcnt lgkmcnt(0)
            v_writelane_b32 v{vreg}, s0, {k}
            """)
    a.stamp = stamp
    a.raw(HEADER.rstrip())
    a.raw(f"; @launch grid=({NWG},1,1) block=(704,1,1) lds={LDS_TOTAL}")
    a.raw('.amdgcn_target "amdgcn-amd-amdhsa--gfx950"')
    a.raw(".text")
    a.raw(f".globl {KN}")
    a.raw(".p2align 8")
    a.raw(f".type {KN},@function")
    a.raw(f"{KN}:")

    a(f"""
    s_cmp_ge_u32 s2, {NWG}
    s_cbranch_scc1 .Lexit
    s_load_dwordx16 s[4:19], s[0:1], 0
    s_load_dwordx8 s[20:27], s[0:1], 64
    s_load_dwordx4 s[28:31], s[0:1], 96
    v_lshrrev_b32 v3, 6, v0
    v_and_b32 v1, 63, v0
    v_readfirstlane_b32 s68, v3
    v_lshlrev_b32 v2, 4, v1
    """)
    a("""
    s_lshr_b32 s69, s2, 5
    s_and_b32 s70, s2, 31
    s_lshr_b32 s71, s2, 7
    s_and_b32 s72, s2, 127
    """)
    a("""
    s_cmp_eq_u32 s70, 25
    s_cselect_b32 s73, 1, 0
    """)
    a("""
    s_mov_b32 s34, 0x10000000
    s_mov_b32 s35, 0x20000
    s_mov_b32 s58, 256
    s_mov_b32 s59, 0x20000
    s_waitcnt lgkmcnt(0)
    s_mov_b32 s32, s30
    s_mov_b32 s33, s31
    s_mov_b32 s56, s28
    s_mov_b32 s57, s29
    """)
    a("""
    s_add_u32 s74, s69, 8
    s_sub_u32 s76, s70, 25
    s_cmp_le_u32 s70, 25
    s_cselect_b32 s74, s74, s69
    s_cselect_b32 s75, s70, s76
    """)
    a(f"""
    s_lshl_b32 s76, s74, 5
    s_add_u32 s76, s76, s75
    s_mul_i32 s76, s76, 2560
    s_add_u32 s76, s76, {PG_BASE}
    s_lshl_b32 s77, s69, 5
    s_mul_i32 s77, s77, 2560
    s_add_u32 s77, s77, {PG_BASE}
    """)
    a("""
    s_cmp_eq_u32 s68, 0
    s_cbranch_scc1 .Lhelper
    """)

    a(".Lcompute:")
    a("""
    s_sub_u32 s78, s68, 1
    s_mul_i32 s79, s70, 10
    s_add_u32 s79, s79, s78
    s_lshl_b32 s80, s79, 5
    s_sub_u32 s81, s80, 2048
    s_cmpk_lt_u32 s79, 256
    s_cselect_b32 s80, s80, s81
    s_cselect_b64 s[36:37], s[16:17], s[6:7]
    s_cselect_b64 s[40:41], s[18:19], s[8:9]
    s_cselect_b32 s82, 0, 1
    """)
    a("""
    s_mov_b32 s38, 0x2000000
    s_mov_b32 s39, 0x20000
    s_mov_b32 s42, 0x2000000
    s_mov_b32 s43, 0x20000
    s_lshl_b32 s83, s69, 13
    s_add_u32 s83, s83, s80
    s_lshl_b32 s83, s83, 9
    s_and_b32 s84, s73, s82
    """)
    a("v_mov_b32 v7, 0")
    a.stamp(0)
    KB = 8
    VB = 72
    Q = 136
    PS = 144
    S0, S1 = 160, 161
    PL0, PH0, PL1, PH1 = 162, 163, 164, 165
    T0, T1 = 166, 167
    nout = 0
    for t in range(16):
        if t == PRE_B0:
            a("s_barrier")
        if t % 4 == 0:
            a(f"s_add_u32 s85, s83, {t*1024}")
        a(f"buffer_load_dwordx4 v[{KB+4*t}:{KB+4*t+3}], v2, s[36:39], s85 offen offset:{(t%4)*1024}{NT}")
    for t in range(16):
        if t % 4 == 0:
            a(f"s_add_u32 s85, s83, {t*1024}")
        a(f"buffer_load_dwordx4 v[{VB+4*t}:{VB+4*t+3}], v2, s[40:43], s85 offen offset:{(t%4)*1024}{NT}")
    a.stamp(1)
    if STREAM_ONLY:
        a("""
        s_waitcnt vmcnt(0)
        s_cmp_eq_u32 s71, 0
        s_cselect_b64 s[44:45], s[12:13], s[22:23]
        s_mov_b32 s46, 3670016
        s_mov_b32 s47, 0x20000
        s_lshl_b32 s93, s72, 5
        s_and_b32 s94, s78, 7
        s_lshl_b32 s94, s94, 2
        s_add_u32 s93, s93, s94
        s_mul_i32 s93, s93, 896
        """)
        for r in range(4):
            a(f"buffer_load_dwordx4 v[{KB+4*r}:{KB+4*r+3}], v2, s[44:47], s93 offen offset:{r*896}{NT}")
        a("""
        s_waitcnt vmcnt(0)
        s_branch .Lexit
        """)
    a("""
    v_and_b32 v3, 2, v1
    v_cmp_ne_u32 s[86:87], 0, v3
    v_and_b32 v3, 1, v1
    v_cmp_ne_u32 s[88:89], 0, v3
    """)
    a(f"""
    v_mov_b32 v3, {FLAG_LDS}
    s_mov_b32 s90, 0
    .Lc_waitq:
    ds_read_b32 v4, v3
    s_waitcnt lgkmcnt(0)
    v_readfirstlane_b32 s91, v4
    s_cmp_eq_u32 s91, 1
    s_cbranch_scc1 .Lc_gotq
    s_sleep 2
    s_add_u32 s90, s90, 1
    s_cmp_lt_u32 s90, {1<<24}
    s_cbranch_scc1 .Lc_waitq
    .Lc_gotq:
    """)
    a.stamp(2)
    a(f"""
    v_and_b32 v3, 31, v1
    v_lshlrev_b32 v3, 4, v3
    s_lshl_b32 s91, s84, 10
    v_add_u32 v3, s91, v3
    ds_read_b128 v[{Q}:{Q+3}], v3 offset:{Q_LDS}
    ds_read_b128 v[{Q+4}:{Q+7}], v3 offset:{Q_LDS+512}
    s_mov_b32 s92, {f32bits(CST):#x}
    s_waitcnt lgkmcnt(0)
    """)
    for c in range(2):
        a(f"s_waitcnt vmcnt({32 - 8*(c+1)})")
        for ib in range(0, 8, 2):
            accs = [(i, h) for i in (ib, ib + 1) for h in (0, 1)]
            for jj in range(4):
                for (i, h) in accs:
                    t = 8 * c + i
                    r = PS + 2 * i + h
                    if jj == 0:
                        a(f"v_dot2_f32_bf16 v{r}, v{KB+4*t+jj}, v{Q+4*h+jj}, 0")
                    else:
                        a(f"v_dot2c_f32_bf16 v{r}, v{KB+4*t+jj}, v{Q+4*h+jj}")
        a("s_nop 3")
        for ln in reduce16_half(list(range(PS, PS + 16)), [T0, T1], "s[86:87]", "s[88:89]"):
            a(ln)
        a(f"v_mov_b32 v{S0+c}, v{PS}")
    a.stamp(3)
    a("""
    s_cmp_eq_u32 s71, 0
    s_cselect_b64 s[44:45], s[12:13], s[22:23]
    s_mov_b32 s46, 3670016
    s_mov_b32 s47, 0x20000
    s_lshl_b32 s93, s72, 5
    s_and_b32 s94, s78, 7
    s_lshl_b32 s94, s94, 2
    s_add_u32 s93, s93, s94
    s_mul_i32 s93, s93, 896
    """)
    WO = KB
    if WO_MASK:
        a("""
        v_cmp_gt_u32 vcc, 56, v1
        v_mov_b32 v5, 0x7f000000
        s_nop 0
        v_cndmask_b32 v5, v5, v2, vcc
        """)
    else:
        a("v_mov_b32 v5, v2")
    for r in range(4):
        a(f"buffer_load_dwordx4 v[{WO+4*r}:{WO+4*r+3}], v5, s[44:47], s93 offen offset:{r*896}{NT}")
    M, TA, TB, TC, TD = PS, PS + 1, PS + 2, PS + 3, PS + 4
    NM, P0, P1, PSUM = PS + 5, PS + 6, PS + 7, PS + 8

    def butterfly(op, src, dst):
        L = []
        L.append("s_nop 1")
        L.append(f"{op}_dpp v{TA}, v{src}, v{src} quad_perm:[2,3,0,1] row_mask:0xf bank_mask:0xf")
        L.append("s_nop 1")
        L.append(f"{op}_dpp v{TB}, v{TA}, v{TA} row_shl:4 row_mask:0xf bank_mask:0x5")
        L.append(f"{op}_dpp v{TB}, v{TA}, v{TA} row_shr:4 row_mask:0xf bank_mask:0xa")
        L.append("s_nop 1")
        L.append(f"{op}_dpp v{TC}, v{TB}, v{TB} row_ror:8 row_mask:0xf bank_mask:0xf")
        L.append(f"v_mov_b32 v{TD}, v{TC}")
        L.append("s_nop 1")
        L.append(f"v_permlane32_swap_b32 v{TC}, v{TD}")
        L.append(f"{op} v{dst}, v{TC}, v{TD}")
        return L

    a(f"v_max_f32 v{M}, v{S0}, v{S1}")
    for ln in butterfly("v_max_f32", M, M):
        a(ln)
    a(f"""
    v_mul_f32 v{NM}, s92, v{M}
    v_sub_f32 v{NM}, 0, v{NM}
    v_fma_f32 v{P0}, v{S0}, s92, v{NM}
    v_fma_f32 v{P1}, v{S1}, s92, v{NM}
    v_exp_f32 v{P0}, v{P0}
    v_exp_f32 v{P1}, v{P1}
    s_nop 0
    v_add_f32 v{PSUM}, v{P0}, v{P1}
    v_cvt_pk_bf16_f32 v{PL0}, v{P0}, 0
    v_cvt_pk_bf16_f32 v{PH0}, 0, v{P0}
    v_cvt_pk_bf16_f32 v{PL1}, v{P1}, 0
    v_cvt_pk_bf16_f32 v{PH1}, 0, v{P1}
    """)
    for ln in butterfly("v_add_f32", PSUM, PSUM):
        a(ln)
    a(f"""
    v_sub_f32 v{T0}, 0, v{NM}
    v_mov_b32 v{T1}, v{PSUM}
    """)
    ACC = PS
    for e in range(16):
        a(f"v_mov_b32 v{ACC+e}, 0")
    for t in range(16):
        c, i = t >> 3, t & 7
        a(f"s_waitcnt vmcnt({15 - t + 4})")
        pl, ph = (PL0, PH0) if c == 0 else (PL1, PH1)
        for h in range(2):
            for e in range(4):
                a(f"v_dot2c_f32_bf16_dpp v{ACC+8*h+2*e}, v{pl}, v{VB+4*t+e} row_newbcast:{2*i+h} row_mask:0xf bank_mask:0xf")
                a(f"v_dot2c_f32_bf16_dpp v{ACC+8*h+2*e+1}, v{ph}, v{VB+4*t+e} row_newbcast:{2*i+h} row_mask:0xf bank_mask:0xf")
    a.stamp(4)
    a("s_nop 3")
    for e in range(8):
        a(f"v_permlane32_swap_b32 v{ACC+e}, v{ACC+8+e}")
    for e in range(8):
        a(f"v_add_f32 v{ACC+e}, v{ACC+e}, v{ACC+8+e}")
    a(f"""
    s_lshl_b32 s91, s78, 11
    v_lshlrev_b32 v3, 5, v1
    v_add_u32 v3, s91, v3
    ds_write_b128 v3, v[{ACC}:{ACC+3}] offset:{O_LDS}
    ds_write_b128 v3, v[{ACC+4}:{ACC+7}] offset:{O_LDS+16}
    s_lshl_b32 s91, s78, 4
    v_lshlrev_b32 v4, 3, v1
    v_add_u32 v4, s91, v4
    v_cmp_gt_u32 vcc, 2, v1
    s_and_saveexec_b64 s[94:95], vcc
    ds_write_b64 v4, v[{T0}:{T1}] offset:{ML_LDS}
    s_mov_b64 exec, s[94:95]
    s_waitcnt lgkmcnt(0)
    s_barrier
    """)
    a.stamp(5)
    a("""
    s_cmp_ge_u32 s78, 8
    s_cbranch_scc1 .Lc_skip_to_b3
    """)
    a(f"""
    s_lshr_b32 s91, s78, 2
    s_and_b32 s93, s78, 3
    s_lshl_b32 s94, s91, 10
    s_lshl_b32 s95, s93, 8
    s_add_u32 s94, s94, s95
    v_lshlrev_b32 v3, 2, v1
    v_add_u32 v3, s94, v3
    s_lshl_b32 s95, s91, 3
    v_mov_b32 v4, s95
    """)
    MW = 72
    OW = 92
    for w in range(10):
        a(f"ds_read_b64 v[{MW+2*w}:{MW+2*w+1}], v4 offset:{ML_LDS + 16*w}")
    for w in range(10):
        a(f"ds_read_b32 v{OW+w}, v3 offset:{O_LDS + 2048*w}")
    ML_, MH_, MM_ = 104, 105, 106
    SCW = 108
    OL_, OH_, LL_, LH_ = 120, 121, 122, 123
    a(f"""
    s_cmp_eq_u32 s73, 1
    s_cselect_b64 s[96:97], -1, 0
    s_waitcnt lgkmcnt(0)
    v_max3_f32 v{ML_}, v{MW}, v{MW+2}, v{MW+4}
    v_max3_f32 v{ML_}, v{ML_}, v{MW+6}, v{MW+8}
    v_max_f32 v{ML_}, v{ML_}, v{MW+10}
    v_max3_f32 v{MH_}, v{MW+12}, v{MW+14}, v{MW+16}
    v_max_f32 v{MH_}, v{MH_}, v{MW+18}
    v_max_f32 v{MM_}, v{ML_}, v{MH_}
    v_cndmask_b32 v{ML_}, v{MM_}, v{ML_}, s[96:97]
    v_cndmask_b32 v{MH_}, v{MM_}, v{MH_}, s[96:97]
    """)
    for w in range(10):
        ref = ML_ if w < 6 else MH_
        a(f"v_sub_f32 v{SCW+w}, v{MW+2*w}, v{ref}")
    for w in range(10):
        a(f"v_exp_f32 v{SCW+w}, v{SCW+w}")
    a("s_nop 0")
    a(f"v_mul_f32 v{OL_}, v{SCW}, v{OW}")
    a(f"v_mul_f32 v{LL_}, v{SCW}, v{MW+1}")
    for w in range(1, 6):
        a(f"v_fmac_f32 v{OL_}, v{SCW+w}, v{OW+w}")
        a(f"v_fmac_f32 v{LL_}, v{SCW+w}, v{MW+2*w+1}")
    a(f"v_mul_f32 v{OH_}, v{SCW+6}, v{OW+6}")
    a(f"v_mul_f32 v{LH_}, v{SCW+6}, v{MW+13}")
    for w in range(7, 10):
        a(f"v_fmac_f32 v{OH_}, v{SCW+w}, v{OW+w}")
        a(f"v_fmac_f32 v{LH_}, v{SCW+w}, v{MW+2*w+1}")
    OS_, LS_ = 124, 125
    a(f"""
    v_add_f32 v{OS_}, v{OL_}, v{OH_}
    v_add_f32 v{LS_}, v{LL_}, v{LH_}
    v_cndmask_b32 v{OL_}, v{OS_}, v{OL_}, s[96:97]
    v_cndmask_b32 v{LL_}, v{LS_}, v{LL_}, s[96:97]
    """)

    def canon(r):
        return [f"v_cmp_o_f32 vcc, v{r}, v{r}", f"v_cndmask_b32 v{r}, v126, v{r}, vcc"]

    a("v_mov_b32 v126, 0x7fc00000")
    for r in (OL_, OH_, ML_, LL_, MH_, LH_):
        for ln in canon(r):
            a(ln)
    MLP = 128
    a(f"""
    s_mul_i32 s95, s91, 1280
    s_lshl_b32 s98, s93, 8
    s_add_u32 s95, s95, s98
    v_lshlrev_b32 v5, 2, v1
    v_add_u32 v5, s95, v5
    buffer_store_dword v{OL_}, v5, s[32:35], s76 offen {COH}
    v_mov_b32 v{MLP}, v{ML_}
    v_mov_b32 v{MLP+1}, v{LL_}
    s_mul_i32 s98, s91, 1280
    v_mov_b32 v6, s98
    s_cmp_eq_u32 s93, 0
    s_cselect_b64 s[98:99], 1, 0
    s_mov_b64 exec, s[98:99]
    s_cbranch_execz .Lc_noml0
    buffer_store_dwordx2 v[{MLP}:{MLP+1}], v6, s[32:35], s76 offen offset:1024 {COH}
    .Lc_noml0:
    s_mov_b64 exec, -1
    s_cmp_eq_u32 s73, 1
    s_cbranch_scc0 .Lc_noseg1
    buffer_store_dword v{OH_}, v5, s[32:35], s77 offen {COH}
    v_mov_b32 v{MLP+2}, v{MH_}
    v_mov_b32 v{MLP+3}, v{LH_}
    s_mov_b64 exec, s[98:99]
    s_cbranch_execz .Lc_noml1
    buffer_store_dwordx2 v[{MLP+2}:{MLP+3}], v6, s[32:35], s77 offen offset:1024 {COH}
    .Lc_noml1:
    s_mov_b64 exec, -1
    .Lc_noseg1:
    """)
    a.stamp(6)
    a.stamp(6)
    a(f"""
    s_barrier
    s_lshl_b32 s91, s78, 4
    s_add_u32 s91, s91, {O3_LDS}
    v_mov_b32 v3, s91
    ds_read_b128 v[72:75], v3
    s_waitcnt lgkmcnt(0)
    v_readfirstlane_b32 s94, v72
    v_readfirstlane_b32 s96, v73
    v_readfirstlane_b32 s98, v74
    v_readfirstlane_b32 s100, v75
    s_nop 3
    s_lshl_b32 s95, s94, 16
    s_lshl_b32 s97, s96, 16
    s_lshl_b32 s99, s98, 16
    s_lshl_b32 s101, s100, 16
    """)
    a.stamp(7)
    YA = 96
    a("s_waitcnt vmcnt(0)")
    for r in range(4):
        slo, shi = 94 + 2 * r, 95 + 2 * r
        for e in range(4):
            if r == 0:
                a(f"v_dot2_f32_bf16 v{YA+2*e}, v{WO+4*r+e}, s{slo}, 0")
                a(f"v_dot2_f32_bf16 v{YA+2*e+1}, v{WO+4*r+e}, s{shi}, 0")
            else:
                a(f"v_dot2_f32_bf16 v{YA+2*e}, v{WO+4*r+e}, s{slo}, v{YA+2*e}")
                a(f"v_dot2_f32_bf16 v{YA+2*e+1}, v{WO+4*r+e}, s{shi}, v{YA+2*e+1}")
    a(f"""
    s_lshl_b32 s91, s78, 11
    v_lshlrev_b32 v3, 5, v1
    v_add_u32 v3, s91, v3
    s_nop 1
    ds_write_b128 v3, v[{YA}:{YA+3}] offset:{Y_LDS}
    ds_write_b128 v3, v[{YA+4}:{YA+7}] offset:{Y_LDS+16}
    s_waitcnt lgkmcnt(0)
    s_branch .Lc_b3
    .Lc_skip_to_b3:
    s_barrier
    .Lc_b3:
    s_barrier
    """)
    a.stamp(8)
    a("""
    s_cmp_ge_u32 s78, 7
    s_cbranch_scc1 .Lc_after_y
    """)
    a(f"""
    s_lshl_b32 s91, s78, 8
    v_lshlrev_b32 v3, 2, v1
    v_add_u32 v3, s91, v3
    """)
    for w in range(8):
        a(f"ds_read_b32 v{72+w}, v3 offset:{Y_LDS + 2048*w}")
    a(f"""
    s_mul_i32 s93, s2, 1792
    s_add_u32 s93, s93, {Y_BASE}
    v_mov_b32 v126, 0x7fc00000
    s_waitcnt lgkmcnt(0)
    v_add_f32 v72, v72, v73
    v_add_f32 v74, v74, v75
    v_add_f32 v76, v76, v77
    v_add_f32 v78, v78, v79
    v_add_f32 v72, v72, v74
    v_add_f32 v76, v76, v78
    v_add_f32 v72, v72, v76
    v_cmp_o_f32 vcc, v72, v72
    v_cndmask_b32 v72, v126, v72, vcc
    buffer_store_dword v72, v3, s[32:35], s93 offen {COH}
    .Lc_after_y:
    """)
    a.stamp(9)
    a(f"""
    s_cmp_ge_u32 s2, 28
    s_cbranch_scc1 .Lend
    s_cmp_ge_u32 s78, 8
    s_cbranch_scc1 .Lc_skip_to_b4
    """)
    ZA, ZB = 72, 76
    a(f"""
    v_lshrrev_b32 v3, 2, v1
    v_mul_u32_u24 v3, 1792, v3
    v_and_b32 v4, 3, v1
    v_lshlrev_b32 v4, 4, v4
    v_add_u32 v3, v3, v4
    s_mul_i32 s91, s78, {32*1792}
    s_lshl_b32 s93, s2, 6
    s_add_u32 s91, s91, s93
    s_add_u32 s91, s91, {Y_BASE}
    s_add_u32 s93, s91, {16*1792}
    s_mov_b32 s90, 0
    .Lc_poll4:
    buffer_load_dwordx4 v[{ZA}:{ZA+3}], v3, s[32:35], s91 offen {COH}
    buffer_load_dwordx4 v[{ZB}:{ZB+3}], v3, s[32:35], s93 offen {COH}
    s_waitcnt vmcnt(0)
    v_max3_u32 v80, v{ZA}, v{ZA+1}, v{ZA+2}
    v_max3_u32 v80, v80, v{ZA+3}, v{ZB}
    v_max3_u32 v80, v80, v{ZB+1}, v{ZB+2}
    v_max_u32 v80, v80, v{ZB+3}
    v_cmp_eq_u32 vcc, -1, v80
    s_cbranch_vccz .Lc_got4
    s_add_u32 s90, s90, 1
    s_cmp_lt_u32 s90, {POLL_LIMIT}
    s_cbranch_scc1 .Lc_poll4
    .Lc_got4:
    v_add_f32 v{ZA}, v{ZA}, v{ZB}
    v_add_f32 v{ZA+1}, v{ZA+1}, v{ZB+1}
    v_add_f32 v{ZA+2}, v{ZA+2}, v{ZB+2}
    v_add_f32 v{ZA+3}, v{ZA+3}, v{ZB+3}
    s_nop 1
    v_permlane16_swap_b32 v{ZA}, v{ZA+1}
    v_permlane16_swap_b32 v{ZA+2}, v{ZA+3}
    v_add_f32 v{ZA}, v{ZA}, v{ZA+1}
    v_add_f32 v{ZA+2}, v{ZA+2}, v{ZA+3}
    s_nop 1
    v_permlane32_swap_b32 v{ZA}, v{ZA+2}
    v_add_f32 v{ZA}, v{ZA}, v{ZA+2}
    s_nop 1
    v_add_f32_dpp v{ZB}, v{ZA}, v{ZA} row_shl:4 row_mask:0xf bank_mask:0x5
    v_add_f32_dpp v{ZB}, v{ZA}, v{ZA} row_shr:4 row_mask:0xf bank_mask:0xa
    s_nop 1
    v_add_f32_dpp v{ZA}, v{ZB}, v{ZB} row_ror:8 row_mask:0xf bank_mask:0xf
    """)
    a.stamp(10)
    a(f"""
    v_lshrrev_b32 v4, 4, v1
    v_and_b32 v5, 3, v1
    v_lshl_add_u32 v4, v5, 2, v4
    v_lshlrev_b32 v4, 2, v4
    s_lshl_b32 s91, s78, 6
    v_add_u32 v4, s91, v4
    ds_write_b32 v4, v{ZA} offset:{F_LDS}
    s_waitcnt lgkmcnt(0)
    .Lc_skip_to_b4:
    s_barrier
    s_cmp_lg_u32 s78, 0
    s_cbranch_scc1 .Lend
    """)
    a.stamp(11)
    a(f"""
    v_lshlrev_b32 v3, 2, v1
    v_cmp_gt_u32 vcc, 16, v1
    s_and_saveexec_b64 s[96:97], vcc
    """)
    for w in range(8):
        a(f"ds_read_b32 v{8+w}, v3 offset:{F_LDS + 64*w}")
    a(f"""
    v_mov_b32 v4, {G_LDS}
    ds_read_b64 v[16:17], v4
    s_mov_b32 s60, s26
    s_mov_b32 s61, s27
    s_mov_b32 s62, 896
    s_mov_b32 s63, 0x20000
    s_waitcnt lgkmcnt(0)
    v_add_f32 v8, v8, v9
    v_add_f32 v10, v10, v11
    v_add_f32 v12, v12, v13
    v_add_f32 v14, v14, v15
    v_add_f32 v8, v8, v10
    v_add_f32 v12, v12, v14
    """)

    def rbf(r, t):
        return [f"v_cvt_pk_bf16_f32 v{t}, v{r}, v{r}", f"v_lshlrev_b32 v{r}, 16, v{t}"]

    for ln in rbf(8, 18) + rbf(12, 19):
        a(ln)
    a("""
    v_mul_f32 v8, v8, v16
    v_mul_f32 v12, v12, v17
    """)
    for ln in rbf(8, 18) + rbf(12, 19):
        a(ln)
    a(f"""
    v_add_f32 v8, v8, v12
    v_cvt_pk_bf16_f32 v8, v8, v8
    v_lshlrev_b32 v3, 1, v1
    s_lshl_b32 s91, s2, 5
    buffer_store_short v8, v3, s[60:63], s91 offen
    s_mov_b64 exec, s[96:97]
    s_branch .Lend
    """)

    a(".Lhelper:")
    a("s_setprio 3")
    a("v_mov_b32 v135, 0")
    a.stamp(0, 135)
    a(f"""
    s_lshr_b32 s78, s72, 1
    s_and_b32 s79, s2, 1
    s_lshl_b32 s80, s71, 1
    s_add_u32 s80, s80, s79
    s_lshl_b32 s80, s80, 12
    s_lshl_b32 s81, s78, 6
    s_add_u32 s80, s80, s81
    s_lshl_b32 s80, s80, 2
    s_add_u32 s80, s80, {QP_BASE}
    """)
    a(f"""
    v_mov_b32 v3, {FLAG_LDS}
    v_mov_b32 v4, 0
    ds_write_b32 v3, v4
    {"s_waitcnt lgkmcnt(0)" if EARLY_B0 else ""}
    {"s_barrier" if EARLY_B0 else ""}
    v_mov_b32 v4, -1
    v_mov_b32 v5, -1
    v_mov_b32 v6, -1
    v_mov_b32 v7, -1
    """)
    nst = 0
    a(f"""
    v_cmp_gt_u32 vcc, 16, v1
    s_and_saveexec_b64 s[82:83], vcc
    buffer_store_dwordx4 v[4:7], v2, s[32:35], s80 offen {COH}
    s_mov_b64 exec, s[82:83]
    """)
    nst += 1
    a(f"""
    buffer_store_dwordx4 v[4:7], v2, s[32:35], s76 offen {COH}
    buffer_store_dwordx4 v[4:7], v2, s[32:35], s76 offen offset:1024 {COH}
    v_cmp_gt_u32 vcc, 32, v1
    s_and_saveexec_b64 s[82:83], vcc
    buffer_store_dwordx4 v[4:7], v2, s[32:35], s76 offen offset:2048 {COH}
    s_mov_b64 exec, s[82:83]
    """)
    nst += 3
    a(f"""
    s_mul_i32 s84, s2, 1792
    s_add_u32 s84, s84, {Y_BASE}
    buffer_store_dwordx4 v[4:7], v2, s[32:35], s84 offen {COH}
    v_cmp_gt_u32 vcc, 48, v1
    s_and_saveexec_b64 s[82:83], vcc
    buffer_store_dwordx4 v[4:7], v2, s[32:35], s84 offen offset:1024 {COH}
    s_mov_b64 exec, s[82:83]
    """)
    nst += 2
    a(f"""
    s_cmp_eq_u32 s73, 1
    s_cbranch_scc0 .Lh_noclr1
    buffer_store_dwordx4 v[4:7], v2, s[32:35], s77 offen {COH}
    buffer_store_dwordx4 v[4:7], v2, s[32:35], s77 offen offset:1024 {COH}
    v_cmp_gt_u32 vcc, 32, v1
    s_and_saveexec_b64 s[82:83], vcc
    buffer_store_dwordx4 v[4:7], v2, s[32:35], s77 offen offset:2048 {COH}
    s_mov_b64 exec, s[82:83]
    .Lh_noclr1:
    """)
    a("""
    s_mov_b32 s52, s4
    s_mov_b32 s53, s5
    s_mov_b32 s54, 896
    s_mov_b32 s55, 0x20000
    s_cmp_eq_u32 s71, 0
    s_cselect_b64 s[48:49], s[10:11], s[20:21]
    s_mov_b32 s50, 3670016
    s_mov_b32 s51, 0x20000
    s_mov_b32 s64, s24
    s_mov_b32 s65, s25
    s_mov_b32 s66, 896
    s_mov_b32 s67, 0x20000
    """)
    XR = 120
    WR = 8
    a(f"""
    v_lshrrev_b32 v3, 3, v1
    v_mul_u32_u24 v134, 56, v3
    s_mul_i32 s85, s79, 448
    """)
    for u in range(7):
        a(f"buffer_load_dwordx2 v[{XR+2*u}:{XR+2*u+1}], v134, s[52:55], s85 offen offset:{8*u}")
    a(f"""
    v_lshrrev_b32 v3, 3, v1
    s_mov_b32 s86, {28*8192}
    v_mul_lo_u32 v3, v3, s86
    v_and_b32 v9, 7, v1
    v_lshl_add_u32 v3, v9, 4, v3
    s_mul_i32 s86, s79, {224*8192}
    s_lshl_b32 s87, s78, 7
    s_add_u32 s86, s86, s87
    """)
    for t in range(28):
        a(f"buffer_load_dwordx4 v[{WR+4*t}:{WR+4*t+3}], v3, s[48:51], s86 offen{NT}")
        if t != 27:
            a("s_add_u32 s86, s86, 8192")
    GX, GW = 136, 140
    a(f"""
    buffer_load_dwordx4 v[{GX}:{GX+3}], v2, s[52:55], 0 offen
    buffer_load_dwordx4 v[{GW}:{GW+3}], v2, s[64:67], 0 offen
    s_waitcnt lgkmcnt(0)
    {"" if EARLY_B0 else "s_barrier"}
    """)
    a.stamp(1, 135)
    if STREAM_ONLY:
        a("""
        s_waitcnt vmcnt(0)
        s_branch .Lexit
        """)
    a(f"""
    s_waitcnt vmcnt(37)
    v_mov_b32 v4, 1
    s_and_b32 s89, s2, 3
    s_lshl_b32 s89, s89, 6
    v_mov_b32 v5, 0
    s_mov_b64 exec, 1
    buffer_atomic_add v4, v5, s[56:59], s89 offen
    s_mov_b64 exec, -1
    {"v_and_b32 v162, 3, v1" if PRE_POLL else ""}
    {"v_lshlrev_b32 v162, 6, v162" if PRE_POLL else ""}
    {("buffer_load_dword v163, v162, s[56:59], 0 offen " + COH) if PRE_POLL else ""}
    """)
    ACCQ = 144
    XL, XH = 152, 153
    for t in range(28):
        if t % 4 == 0:
            a(f"s_waitcnt vmcnt({28 - (t+4) + (4 if PRE_POLL else 3)})")
        u = t >> 1
        xr = XR + u
        if t % 2 == 0:
            a(f"v_and_b32 v{XL}, 0xffff, v{xr}")
            a(f"v_lshlrev_b32 v{XH}, 16, v{xr}")
        else:
            a(f"v_lshrrev_b32 v{XL}, 16, v{xr}")
            a(f"v_and_b32 v{XH}, 0xffff0000, v{xr}")
        a("s_nop 0")
        for e in range(4):
            if t == 0:
                a(f"v_dot2_f32_bf16 v{ACCQ+2*e}, v{WR+4*t+e}, v{XL}, 0")
                a(f"v_dot2_f32_bf16 v{ACCQ+2*e+1}, v{WR+4*t+e}, v{XH}, 0")
            else:
                a(f"v_dot2c_f32_bf16 v{ACCQ+2*e}, v{WR+4*t+e}, v{XL}")
                a(f"v_dot2c_f32_bf16 v{ACCQ+2*e+1}, v{WR+4*t+e}, v{XH}")
    a.stamp(2, 135)
    a("s_nop 3")
    for k in range(4):
        x, y = ACCQ + 2 * k, ACCQ + 2 * k + 1
        a(f"v_add_f32_dpp v{x}, v{x}, v{x} row_ror:8 row_mask:0xf bank_mask:0x3")
    for k in range(4):
        x, y = ACCQ + 2 * k, ACCQ + 2 * k + 1
        a(f"v_add_f32_dpp v{x}, v{y}, v{y} row_ror:8 row_mask:0xf bank_mask:0xc")
    a(f"""
    s_nop 1
    v_permlane16_swap_b32 v{ACCQ}, v{ACCQ+2}
    v_permlane16_swap_b32 v{ACCQ+4}, v{ACCQ+6}
    v_add_f32 v{ACCQ}, v{ACCQ}, v{ACCQ+2}
    v_add_f32 v{ACCQ+4}, v{ACCQ+4}, v{ACCQ+6}
    s_nop 1
    v_permlane32_swap_b32 v{ACCQ}, v{ACCQ+4}
    v_add_f32 v{ACCQ}, v{ACCQ}, v{ACCQ+4}
    v_mov_b32 v ACCT, 0x7fc00000
    """.replace("v ACCT", "v154"))
    a(f"""
    v_cmp_o_f32 vcc, v{ACCQ}, v{ACCQ}
    v_cndmask_b32 v{ACCQ}, v154, v{ACCQ}, vcc
    v_and_b32 v3, 7, v1
    v_lshrrev_b32 v9, 3, v1
    v_lshl_add_u32 v3, v3, 3, v9
    v_lshlrev_b32 v3, 2, v3
    buffer_store_dword v{ACCQ}, v3, s[32:35], s80 offen {COH}
    """)
    a(f"""
    s_mov_b32 s90, 0
    v_and_b32 v5, 3, v1
    v_lshlrev_b32 v5, 6, v5
    {"s_waitcnt vmcnt(1)" if PRE_POLL else ""}
    {"v_mov_b32 v4, v163" if PRE_POLL else ""}
    {"s_branch .Lh_chkinit" if PRE_POLL else ""}
    .Lh_pollinit:
    buffer_load_dword v4, v5, s[56:59], 0 offen {COH}
    s_waitcnt vmcnt(0)
    .Lh_chkinit:
    s_nop 1
    v_readlane_b32 s91, v4, 0
    v_readlane_b32 s92, v4, 1
    v_readlane_b32 s93, v4, 2
    v_readlane_b32 s94, v4, 3
    s_nop 3
    s_add_u32 s91, s91, s92
    s_add_u32 s93, s93, s94
    s_add_u32 s91, s91, s93
    s_cmp_ge_u32 s91, {NWG}
    s_cbranch_scc1 .Lh_gotinit
    s_sleep 1
    s_add_u32 s90, s90, 1
    s_cmp_lt_u32 s90, {POLL_LIMIT}
    s_cbranch_scc1 .Lh_pollinit
    .Lh_gotinit:
    """)
    a.stamp(4, 135)
    Qa, Qb, Qc, Qd = 8, 12, 16, 20

    def fetch_q(seg, goff_sgpr):
        lab = a.label("Lh_pollq")
        labd = a.label("Lh_gotq")
        a(f"""
        s_mov_b32 s90, 0
        s_add_u32 s92, {goff_sgpr}, 16384
        {lab}:
        buffer_load_dwordx4 v[{Qa}:{Qa+3}], v2, s[32:35], {goff_sgpr} offen {COH}
        buffer_load_dwordx4 v[{Qb}:{Qb+3}], v2, s[32:35], {goff_sgpr} offen offset:1024 {COH}
        buffer_load_dwordx4 v[{Qc}:{Qc+3}], v2, s[32:35], s92 offen {COH}
        buffer_load_dwordx4 v[{Qd}:{Qd+3}], v2, s[32:35], s92 offen offset:1024 {COH}
        s_waitcnt vmcnt(0)
        v_max3_u32 v24, v{Qa}, v{Qa+1}, v{Qa+2}
        v_max3_u32 v24, v24, v{Qa+3}, v{Qb}
        v_max3_u32 v24, v24, v{Qb+1}, v{Qb+2}
        v_max3_u32 v24, v24, v{Qb+3}, v{Qc}
        v_max3_u32 v24, v24, v{Qc+1}, v{Qc+2}
        v_max3_u32 v24, v24, v{Qc+3}, v{Qd}
        v_max3_u32 v24, v24, v{Qd+1}, v{Qd+2}
        v_max_u32 v24, v24, v{Qd+3}
        v_cmp_eq_u32 vcc, -1, v24
        s_cbranch_vccz {labd}
        s_sleep 1
        s_add_u32 s90, s90, 1
        s_cmp_lt_u32 s90, {POLL_LIMIT}
        s_cbranch_scc1 {lab}
        {labd}:
        """)
        for e in range(4):
            a(f"v_add_f32 v{Qa+e}, v{Qa+e}, v{Qc+e}")
            a(f"v_add_f32 v{Qb+e}, v{Qb+e}, v{Qd+e}")
        a(f"""
        v_cvt_pk_bf16_f32 v24, v{Qa}, v{Qa+1}
        v_cvt_pk_bf16_f32 v25, v{Qa+2}, v{Qa+3}
        v_cvt_pk_bf16_f32 v26, v{Qb}, v{Qb+1}
        v_cvt_pk_bf16_f32 v27, v{Qb+2}, v{Qb+3}
        v_lshlrev_b32 v28, 3, v1
        s_nop 0
        ds_write_b64 v28, v[24:25] offset:{Q_LDS + seg*1024}
        ds_write_b64 v28, v[26:27] offset:{Q_LDS + seg*1024 + 512}
        """)

    a(f"""
    s_lshr_b32 s91, s74, 3
    s_lshl_b32 s91, s91, 15
    s_lshl_b32 s93, s69, 11
    s_add_u32 s91, s91, s93
    s_add_u32 s91, s91, {QP_BASE}
    """)
    fetch_q(0, "s91")
    a(f"""
    s_cmp_eq_u32 s73, 1
    s_cbranch_scc0 .Lh_noq1
    s_lshl_b32 s91, s69, 11
    s_add_u32 s91, s91, {QP_BASE}
    """)
    fetch_q(1, "s91")
    a.stamp(5, 135)
    a(f"""
    .Lh_noq1:
    s_waitcnt lgkmcnt(0)
    v_mov_b32 v3, {FLAG_LDS}
    v_mov_b32 v4, 1
    ds_write_b32 v3, v4
    """)
    GA = 156
    a(f"s_waitcnt vmcnt(0)")
    a(f"v_mov_b32 v{GA}, 0")
    for e in range(4):
        a(f"""
        v_lshlrev_b32 v157, 16, v{GX+e}
        v_and_b32 v158, 0xffff0000, v{GX+e}
        v_lshlrev_b32 v159, 16, v{GW+e}
        v_and_b32 v160, 0xffff0000, v{GW+e}
        v_mul_f32 v157, v157, v159
        v_mul_f32 v158, v158, v160
        v_cvt_pk_bf16_f32 v157, v157, v158
        s_nop 0
        v_lshlrev_b32 v158, 16, v157
        v_and_b32 v159, 0xffff0000, v157
        v_add_f32 v{GA}, v{GA}, v158
        v_add_f32 v{GA}, v{GA}, v159
        """)
    a("s_nop 1")
    for sh in (1, 2, 4, 8):
        a(f"v_add_f32_dpp v{GA}, v{GA}, v{GA} row_shr:{sh} row_mask:0xf bank_mask:0xf bound_ctrl:0")
        a("s_nop 1")
    a(f"v_add_f32_dpp v{GA}, v{GA}, v{GA} row_bcast:15 row_mask:0xa bank_mask:0xf")
    a("s_nop 1")
    a(f"v_add_f32_dpp v{GA}, v{GA}, v{GA} row_bcast:31 row_mask:0xc bank_mask:0xf")
    a("s_nop 1")
    a(f"""
    v_cvt_pk_bf16_f32 v157, v{GA}, v{GA}
    v_lshlrev_b32 v157, 16, v157
    s_mov_b32 s88, {f32bits(-LOG2E):#x}
    v_mul_f32 v157, s88, v157
    v_exp_f32 v157, v157
    s_nop 0
    v_add_f32 v157, 1.0, v157
    v_rcp_f32 v157, v157
    s_nop 0
    v_cvt_pk_bf16_f32 v157, v157, v157
    v_lshlrev_b32 v160, 16, v157
    v_sub_f32 v161, 1.0, v160
    v_cvt_pk_bf16_f32 v161, v161, v161
    v_lshlrev_b32 v161, 16, v161
    v_mov_b32 v3, {G_LDS}
    v_cmp_eq_u32 vcc, 63, v1
    s_and_saveexec_b64 s[82:83], vcc
    ds_write_b64 v3, v[160:161]
    s_mov_b64 exec, s[82:83]
    """)
    a.stamp(3, 135)
    a("""
    s_waitcnt lgkmcnt(0)
    s_barrier
    """)
    HO = 8
    HM, HL = 24, 25
    a(f"""
    s_lshr_b32 s78, s72, 3
    s_lshr_b32 s79, s78, 1
    s_and_b32 s80, s78, 1
    s_and_b32 s81, s72, 7
    s_lshl_b32 s81, s81, 5
    s_lshl_b32 s82, s71, 3
    s_add_u32 s82, s82, s79
    s_cmp_eq_u32 s71, 0
    s_cselect_b32 s83, 7, 26
    s_lshl_b32 s84, s82, 6
    s_add_u32 s84, s84, s80
    s_mul_i32 s84, s84, 1280
    s_add_u32 s84, s84, {PG_BASE}
    s_lshl_b32 s85, s81, 2
    s_add_u32 s85, s85, s84
    v_lshrrev_b32 v28, 3, v1
    v_and_b32 v29, 7, v1
    """)
    for t in range(4):
        a(f"""
        v_add_u32 v30, {8*t}, v28
        v_cmp_gt_u32 vcc, s83, v30
        s_nop 1
        v_cndmask_b32 v30, 0, v30, vcc
        v_mul_u32_u24 v{32+t}, 2560, v30
        v_lshl_add_u32 v{32+t}, v29, 4, v{32+t}
        """)
    a(f"""
    v_cmp_gt_u32 s[86:87], s83, v1
    s_nop 1
    v_cndmask_b32 v30, 0, v1, s[86:87]
    v_mul_u32_u24 v36, 2560, v30
    s_mov_b32 s90, 0
    """)
    HB = 52
    def p3_issue(base):
        for t in range(4):
            a(f"buffer_load_dwordx4 v[{base+4*t}:{base+4*t+3}], v{32+t}, s[32:35], s85 offen {COH}")
        a(f"buffer_load_dwordx2 v[{base+16}:{base+17}], v36, s[32:35], s84 offen offset:1024 {COH}")
    def p3_check(base):
        a(f"""
        v_max3_u32 v30, v{base}, v{base+1}, v{base+2}
        v_max3_u32 v31, v{base+3}, v{base+4}, v{base+5}
        v_max3_u32 v30, v30, v{base+6}, v{base+7}
        v_max3_u32 v31, v31, v{base+8}, v{base+9}
        v_max3_u32 v30, v30, v{base+10}, v{base+11}
        v_max3_u32 v31, v31, v{base+12}, v{base+13}
        v_max3_u32 v30, v30, v{base+14}, v{base+15}
        v_max3_u32 v31, v31, v{base+16}, v{base+17}
        v_max_u32 v30, v30, v31
        v_cmp_eq_u32 vcc, -1, v30
        """)
    if PIPE_POLL:
        P1, P2 = 52, 70
        p3_issue(P1)
        a("s_sleep 12")
        a(".Lh_poll3:")
        p3_issue(P2)
        a("s_waitcnt vmcnt(5)")
        p3_check(P1)
        a("s_cbranch_vccz .Lh_got3a")
        p3_issue(P1)
        a("s_waitcnt vmcnt(5)")
        p3_check(P2)
        a("s_cbranch_vccz .Lh_got3b")
        a(f"""
        s_add_u32 s90, s90, 1
        s_cmp_lt_u32 s90, {POLL_LIMIT}
        s_cbranch_scc1 .Lh_poll3
        .Lh_got3a:
        """)
        for k in range(18):
            a(f"v_mov_b32 v{HO+k}, v{P1+k}")
        a("s_branch .Lh_got3")
        a(".Lh_got3b:")
        for k in range(18):
            a(f"v_mov_b32 v{HO+k}, v{P2+k}")
        a(".Lh_got3:")
    else:
        a(".Lh_poll3:")
        p3_issue(HO)
        a("s_waitcnt vmcnt(0)")
        p3_check(HO)
        a(f"""
        s_cbranch_vccz .Lh_got3
        s_add_u32 s90, s90, 1
        s_cmp_lt_u32 s90, {POLL_LIMIT}
        s_cbranch_scc1 .Lh_poll3
        .Lh_got3:
        """)
    a(f"""
    v_mov_b32 v37, 0xff800000
    v_cndmask_b32 v{HM}, v37, v{HM}, s[86:87]
    v_cndmask_b32 v{HL}, 0, v{HL}, s[86:87]
    v_mov_b32 v38, v{HM}
    s_nop 1
    v_max_f32_dpp v38, v38, v38 row_shr:1 row_mask:0xf bank_mask:0xf
    s_nop 1
    v_max_f32_dpp v38, v38, v38 row_shr:2 row_mask:0xf bank_mask:0xf
    s_nop 1
    v_max_f32_dpp v38, v38, v38 row_shr:4 row_mask:0xf bank_mask:0xf
    s_nop 1
    v_max_f32_dpp v38, v38, v38 row_shr:8 row_mask:0xf bank_mask:0xf
    s_nop 1
    v_max_f32_dpp v38, v38, v38 row_bcast:15 row_mask:0xa bank_mask:0xf
    s_nop 1
    v_max_f32_dpp v38, v38, v38 row_bcast:31 row_mask:0xc bank_mask:0xf
    s_nop 1
    v_readlane_b32 s88, v38, 63
    s_nop 3
    v_subrev_f32 v38, s88, v{HM}
    v_exp_f32 v38, v38
    s_nop 0
    v_mul_f32 v39, v38, v{HL}
    s_nop 1
    v_add_f32_dpp v39, v39, v39 row_shr:1 row_mask:0xf bank_mask:0xf bound_ctrl:0
    s_nop 1
    v_add_f32_dpp v39, v39, v39 row_shr:2 row_mask:0xf bank_mask:0xf bound_ctrl:0
    s_nop 1
    v_add_f32_dpp v39, v39, v39 row_shr:4 row_mask:0xf bank_mask:0xf bound_ctrl:0
    s_nop 1
    v_add_f32_dpp v39, v39, v39 row_shr:8 row_mask:0xf bank_mask:0xf bound_ctrl:0
    s_nop 1
    v_add_f32_dpp v39, v39, v39 row_bcast:15 row_mask:0xa bank_mask:0xf
    s_nop 1
    v_add_f32_dpp v39, v39, v39 row_bcast:31 row_mask:0xc bank_mask:0xf
    s_nop 1
    v_readlane_b32 s89, v39, 63
    v_lshlrev_b32 v40, 2, v28
    v_add_u32 v41, 32, v40
    v_add_u32 v42, 64, v40
    v_add_u32 v43, 96, v40
    v_rcp_f32 v39, s89
    s_nop 0
    v_mul_f32 v38, v38, v39
    s_nop 1
    ds_bpermute_b32 v44, v40, v38
    ds_bpermute_b32 v45, v41, v38
    ds_bpermute_b32 v46, v42, v38
    ds_bpermute_b32 v47, v43, v38
    s_waitcnt lgkmcnt(0)
    """)
    for e in range(4):
        a(f"v_mul_f32 v{48+e}, v44, v{HO+e}")
    for t in range(1, 4):
        for e in range(4):
            a(f"v_fmac_f32 v{48+e}, v{44+t}, v{HO+4*t+e}")
    a(f"""
    s_nop 1
    v_add_f32_dpp v48, v48, v48 row_ror:8 row_mask:0xf bank_mask:0x3
    v_add_f32_dpp v50, v50, v50 row_ror:8 row_mask:0xf bank_mask:0x3
    v_add_f32_dpp v48, v49, v49 row_ror:8 row_mask:0xf bank_mask:0xc
    v_add_f32_dpp v50, v51, v51 row_ror:8 row_mask:0xf bank_mask:0xc
    s_nop 1
    v_permlane16_swap_b32 v48, v50
    v_add_f32 v48, v48, v50
    v_mov_b32 v49, v48
    s_nop 1
    v_permlane32_swap_b32 v48, v49
    v_add_f32 v48, v48, v49
    v_cvt_pk_bf16_f32 v48, v48, 0
    v_and_b32 v49, 3, v28
    v_lshl_add_u32 v49, v29, 2, v49
    v_lshlrev_b32 v49, 2, v49
    ds_write_b32 v49, v48 offset:{O3_LDS}
    s_waitcnt lgkmcnt(0)
    s_setprio 0
    s_barrier
    s_barrier
    s_cmp_ge_u32 s2, 28
    s_cbranch_scc1 .Lend
    s_barrier
    .Lend:
    """)
    if STAMPS:
        a(f"""
        s_lshl_b32 s3, s2, 4
        s_add_u32 s3, s3, s68
        s_lshl_b32 s3, s3, 8
        s_add_u32 s3, s3, {STAMP_BASE}
        s_cmp_eq_u32 s68, 0
        s_cbranch_scc1 .Lst_h
        v_lshlrev_b32 v3, 2, v1
        buffer_store_dword v7, v3, s[32:35], s3 offen
        s_branch .Lexit
        .Lst_h:
        v_lshlrev_b32 v3, 2, v1
        buffer_store_dword v135, v3, s[32:35], s3 offen
        """)
    a("""
    .Lexit:
    s_endpgm
    """)
    a.raw(kernel_descriptor(KN, 168, 102))
    return a.text()


if __name__ == "__main__":
    if len(sys.argv) > 2 and sys.argv[2] == "stamps":
        STAMPS = True
    for kv in sys.argv[3:]:
        k, v = kv.split("=")
        globals()[k] = eval(v)
    out = sys.argv[1] if len(sys.argv) > 1 else "gated_mix__sliding_block_cached__gqa_block_cached__decode.s"
    open(out, "w").write(gen())
```
